```python
import torch

def _softmax(x, axis=-1):
    return torch.softmax(x, dim=axis)
def _gelu(x):
    return torch.nn.functional.gelu(x, approximate="tanh")
def _silu(x):
    return torch.nn.functional.silu(x)
def _sigmoid(x):
    return torch.sigmoid(x)
def _layernorm(x, axis=-1, eps=1e-5):
    m = x.mean(dim=axis, keepdim=True)
    v = x.var(dim=axis, keepdim=True, unbiased=False)
    return (x - m) / torch.sqrt(v + eps)
def _scatter_add(tgt, idx, src, axis=0):
    return tgt.clone().index_add_(axis, idx, src)
def _segment_sum(src, seg, n):
    out = torch.zeros((n,) + src.shape[1:], dtype=src.dtype)
    return out.index_add_(0, seg, src)
def _pad(x, pw):
    flat = tuple(v for pair in reversed(pw) for v in pair)
    return torch.nn.functional.pad(x, flat)

kernel_name = 'sequential_preLN__compressed_kv_cla__moe_arch_mod__prompt'

def setup_inputs():

    _w = (lambda a: (lambda t: t.to(torch.bfloat16) if t.is_floating_point() else t)(torch.as_tensor(a)))
    def _A_setup():
        B, H, Sq, Sk, D, M = 1, 32, 2048, 2048, 128, 640
        Dc = 4 * D
        return {
            "x": _w((lambda *s: torch.randn(*s, dtype=torch.bfloat16) * 0.05)(B, Sq, M)),
            "c_kv": _w((lambda *s: torch.randn(*s, dtype=torch.bfloat16) * 0.4)(B, Sk, Dc)),
            "w_q": _w((lambda *s: torch.randn(*s, dtype=torch.bfloat16) * 3.2)(M, H, D) * (M ** -0.5)),
            "w_uk": _w((lambda *s: torch.randn(*s, dtype=torch.bfloat16) * 3.2)(Dc, H, D) * (Dc ** -0.5)),
            "w_uv": _w((lambda *s: torch.randn(*s, dtype=torch.bfloat16) * 0.4)(Dc, H, D) * (Dc ** -0.5)),
            "w_o": _w((lambda *s: torch.randn(*s, dtype=torch.bfloat16) * 0.4)(H, D, M) * ((H * D) ** -0.5)),
        }
    _A_in = _A_setup()

    def _B_setup():
        B, S, D, F, C = 1, 2048, 640, 1728, 2
        return {
            "x": _w((lambda *s: torch.randn(*s, dtype=torch.bfloat16) * 0.05)(B, S, D)),
            "w_r": _w((lambda *s: torch.randn(*s, dtype=torch.bfloat16) * 0.05)(D)),
            "w_gate": _w((lambda *s: torch.randn(*s, dtype=torch.bfloat16) * 0.05)(D, F)),
            "w_up": _w((lambda *s: torch.randn(*s, dtype=torch.bfloat16) * 0.05)(D, F)),
            "w_down": _w((lambda *s: torch.randn(*s, dtype=torch.bfloat16) * 0.05)(F, D)),
        }
    _B_in = _B_setup()

    return {
        "A_x": _A_in["x"],
        "A_c_kv": _A_in["c_kv"],
        "A_w_q": _A_in["w_q"],
        "A_w_uk": _A_in["w_uk"],
        "A_w_uv": _A_in["w_uv"],
        "A_w_o": _A_in["w_o"],
        "B_x": _B_in["x"],
        "B_w_r": _B_in["w_r"],
        "B_w_gate": _B_in["w_gate"],
        "B_w_up": _B_in["w_up"],
        "B_w_down": _B_in["w_down"],
    }

def reference(A_x, A_c_kv, A_w_q, A_w_uk, A_w_uv, A_w_o, B_x, B_w_r, B_w_gate, B_w_up, B_w_down):
    def _A_ref(x, c_kv, w_q, w_uk, w_uv, w_o):
        B, Sq, M = x.shape[0], x.shape[1], x.shape[2]
        Sk = c_kv.shape[1]
        H, D = w_q.shape[1], w_q.shape[2]
        q = torch.einsum("bqm,mhd->bhqd", x, w_q)
        k = torch.einsum("bkc,chd->bhkd", c_kv, w_uk)
        v = torch.einsum("bkc,chd->bhkd", c_kv, w_uv)
        scores = torch.einsum("bhqd,bhkd->bhqk", q, k) * (D ** -0.5)
        off = Sk - Sq
        qi = torch.arange(Sq)[:, None]
        kj = torch.arange(Sk)[None, :]
        cmask = kj <= (qi + off)
        scores = torch.where(cmask[None, None], scores, -1e9)
        p = _softmax(scores, axis=-1)
        ctx = torch.einsum("bhqk,bhkd->bhqd", p, v)
        return torch.einsum("bhqd,hdm->bqm", ctx, w_o)

    def _B_ref(x, w_r, w_gate, w_up, w_down):
        B, S, D = x.shape
        C = 2
        r = x @ w_r
        idx = torch.argsort(-r, axis=-1)[:, :C]
        idx_e = (lambda x, n, axis: torch.repeat_interleave(x, n, dim=axis))(idx.reshape(B, C, 1), D, axis=2)
        x_sel = (lambda x, i, axis: torch.take_along_dim(x, i, dim=axis))(x, idx_e, axis=1)
        g = _silu(x_sel @ w_gate)
        u = x_sel @ w_up
        y = (g * u) @ w_down
        r_sel = _sigmoid((lambda x, i, axis: torch.take_along_dim(x, i, dim=axis))(r, idx, axis=1))
        y = y * r_sel.reshape(B, C, 1)
        b_off = (torch.arange(B) * S).reshape(B, 1)
        flat_idx = (idx + b_off).reshape(B * C)
        zero = (x * 0.0).reshape(B * S, D)
        upd = _scatter_add(zero, flat_idx, y.reshape(B * C, D), axis=0)
        return x + upd.reshape(B, S, D)

    x = A_x
    h = x + _A_ref(_layernorm(x, axis=-1), A_c_kv, A_w_q, A_w_uk, A_w_uv, A_w_o)
    h2 = h + _B_ref(_layernorm(h, axis=-1), B_w_r, B_w_gate, B_w_up, B_w_down)
    return h2
```

```python
import re

def v(i): return 'v%d' % i
def a(i): return 'a%d' % i
def s(i): return 's%d' % i
def vr(i, n): return 'v[%d:%d]' % (i, i + n - 1)
def ar(i, n): return 'a[%d:%d]' % (i, i + n - 1)
def sr(i, n): return 's[%d:%d]' % (i, i + n - 1)
def R(f, i, n=1):
    return ('%s%d' % (f, i)) if n == 1 else ('%s[%d:%d]' % (f, i, i + n - 1))

class Asm:
    def __init__(self):
        self.L = []
        self.nlab = 0
    def __call__(self, t):
        for ln in t.split('\n'):
            ln = ln.strip()
            if ln: self.L.append(ln)
    def lab(self, p='L'):
        self.nlab += 1
        return '%s_%d' % (p, self.nlab)
    def text(self):
        return '\n'.join(self.L) + '\n'

_reg = re.compile(r'^(-?)(?:abs\()?([vas])(?:(\d+)|\[(\d+):(\d+)\])\)?$')
def regs_of(tok):
    tok = tok.strip()
    if tok in ('vcc',): return {('s', 106), ('s', 107)}
    if tok == 'vcc_lo': return {('s', 106)}
    if tok == 'exec': return {('s', 126), ('s', 127)}
    if tok == 'm0': return {('s', 124)}
    tok = tok.lstrip('-').strip('|')
    m = _reg.match(tok)
    if not m: return set()
    f = m.group(2)
    if m.group(3) is not None: lo = hi = int(m.group(3))
    else: lo, hi = int(m.group(4)), int(m.group(5))
    return {(f, i) for i in range(lo, hi + 1)}

TRANS = ('v_exp_f32', 'v_rcp_f32', 'v_rsq_f32', 'v_log_f32', 'v_sqrt_f32', 'v_sin_f32', 'v_cos_f32')
def parse(line):
    line = line.split(';')[0].strip()
    if not line or line.endswith(':') or line.startswith('.'): return None
    parts = line.split(None, 1)
    mn = parts[0]
    rest = parts[1] if len(parts) > 1 else ''
    ops, depth, cur = [], 0, ''
    for ch in rest + ',':
        if ch in '[(': depth += 1
        elif ch in '])': depth -= 1
        if ch == ',' and depth == 0:
            ops.append(cur.strip()); cur = ''
        else: cur += ch
    ops = [o for o in ops if o]
    mods = []
    if ops:
        last = ops[-1].split()
        ops[-1] = last[0]; mods = last[1:]
    d = dict(mn=mn, ops=ops, mods=mods, text=line, w=set(), r=set(), cls='other')
    R_ = lambda i: regs_of(ops[i]) if i < len(ops) else set()
    allr = lambda idx: set().union(*[R_(i) for i in idx]) if idx else set()
    n = len(ops)
    if mn.startswith('v_mfma'):
        d['cls'] = 'mfma'; d['w'] = R_(0); d['ab'] = R_(1) | R_(2); d['c'] = R_(3); d['r'] = d['ab'] | d['c']
        d['passes'] = 8 if '32x32' in mn else 4
    elif mn.startswith('v_'):
        d['cls'] = 'valu'
        d['trans'] = any(mn.startswith(t) for t in TRANS)
        if mn.startswith('v_cmp'):
            d['w'] = R_(0); d['r'] = allr(range(1, n))
        elif mn.startswith('v_permlane32_swap') or mn.startswith('v_permlane16_swap'):
            d['w'] = R_(0) | R_(1); d['r'] = R_(0) | R_(1); d['perm'] = True
        elif mn.startswith('v_readfirstlane') or mn.startswith('v_readlane'):
            d['w'] = R_(0); d['r'] = allr(range(1, n)); d['rl'] = True
        elif mn.startswith('v_add_co') or mn.startswith('v_addc_co') or mn.startswith('v_sub_co'):
            d['w'] = R_(0) | R_(1); d['r'] = allr(range(2, n))
        else:
            d['w'] = R_(0); d['r'] = allr(range(1, n))
            if mn.startswith('v_fmac') or mn.startswith('v_pk_fmac') or mn.startswith('v_dot2c'): d['r'] |= R_(0)
            if mn.startswith('v_cndmask') and n == 3: d['r'] |= regs_of('vcc')
        d['dpp'] = any(m.startswith('row_') or m.startswith('quad_perm') or m.startswith('wave_') for m in mods) or '_dpp' in mn
        if d['dpp']: d['r'] |= R_(0)
    elif mn.startswith('ds_'):
        d['cls'] = 'ds'
        if 'read' in mn or 'swizzle' in mn or 'permute' in mn:
            d['w'] = R_(0); d['r'] = allr(range(1, n))
        else:
            d['r'] = allr(range(n))
    elif mn.startswith('buffer_') or mn.startswith('global_'):
        d['cls'] = 'vmem'
        lds = 'lds' in mods or '_lds_' in mn
        d['lds'] = lds
        if mn.startswith('buffer_inv') or mn.startswith('buffer_wbl2'): pass
        elif 'store' in mn:
            d['r'] = allr(range(n)); d['store'] = True
            d['data'] = R_(0) if mn.startswith('buffer') else R_(1)
            d['wide'] = 'x4' in mn or 'x3' in mn
        elif 'atomic' in mn:
            d['r'] = allr(range(n))
            if 'sc0' in mods: d['w'] = R_(0)
        elif lds:
            d['r'] = allr(range(n)) | regs_of('m0')
        else:
            d['w'] = R_(0); d['r'] = allr(range(1, n))
    elif mn.startswith('s_'):
        d['cls'] = 'salu'
        if mn == 's_nop': d['nop'] = int(ops[0], 0) + 1
        elif mn.startswith('s_cmp') or mn.startswith('s_cbranch') or mn.startswith('s_bitcmp') or mn in ('s_waitcnt', 's_barrier', 's_branch', 's_endpgm', 's_sleep', 's_setprio'):
            d['r'] = allr(range(n))
        else:
            d['w'] = R_(0); d['r'] = allr(range(1, n))
            if 'saveexec' in mn: d['w'] |= regs_of('exec')
    return d

def check_hazards(lines, name=''):
    ins = []
    for ln in lines:
        p = parse(ln)
        if p is not None: ins.append(p)
    msgs = []
    pos = []
    t = 0
    for p in ins:
        pos.append(t)
        t += p.get('nop', 1)
    W = 24
    for j, q in enumerate(ins):
        for i in range(j - 1, max(-1, j - W), -1):
            p = ins[i]
            dist = pos[j] - pos[i] - p.get('nop', 1)
            if dist >= 20: break
            need = 0; why = ''
            vw = {r for r in p['w'] if r[0] in 'va'}
            sw = {r for r in p['w'] if r[0] == 's'}
            if p['cls'] == 'valu':
                if q['cls'] == 'mfma' and vw & q['r']: need, why = 2, 'VALU->MFMA'
                if q['cls'] == 'valu':
                    if p.get('trans') and not q.get('trans') and vw & (q['r']): need, why = max(need, 1), 'trans->valu'
                    if sw & q['r']: need, why = max(need, 2), 'VALU sgpr->VALU'
                    if q.get('rl') and vw & q['r']: need, why = max(need, 1), 'VALU->readlane'
                    if q.get('perm') and vw & q['r']: need, why = max(need, 2), 'VALU->permlane'
                    if q.get('dpp') and vw & q['r']: need, why = max(need, 2), 'VALU->dpp'
                if q['cls'] == 'vmem' and sw & q['r']: need, why = max(need, 5), 'VALU sgpr->VMEM'
            if p['cls'] == 'mfma':
                base = 12 if p['passes'] == 8 else 8
                if q['cls'] == 'mfma':
                    if p['w'] & q['ab']: need, why = base, 'MFMA D->MFMA AB'
                    elif p['w'] & q['c'] and p['w'] != q['c']: need, why = base - 2, 'MFMA D->overlap C'
                    elif p['w'] & q['w'] and p['w'] != q['c'] and not (p['w'] == q['w']): need, why = base - 2, 'MFMA WAW partial'
                elif q['cls'] in ('valu', 'ds', 'vmem'):
                    if p['w'] & (q['r'] | q['w']): need, why = base, 'MFMA D->' + q['cls']
                    if q['cls'] == 'valu' and p['c'] & q['w']: need, why = max(need, base - 5), 'MFMA C WAR'
            if p['cls'] == 'salu' and ('s', 124) in p['w'] and q['cls'] == 'vmem' and q.get('lds'): need, why = 1, 'M0->DMA'
            if p['cls'] == 'vmem' and p.get('store') and p.get('wide') and q['cls'] == 'valu' and p['data'] & q['w']: need, why = 2, 'store data WAR'
            if dist < need:
                msgs.append('%s HAZARD %s need %d have %d:\n    %s\n    %s' % (name, why, need, dist, p['text'], q['text']))
    return msgs

def interleave(A, spine, fillers, lgkm_state=None, report=None, vm_state=None):
    q = list(lgkm_state) if lgkm_state else []
    vq = list(vm_state) if vm_state is not None else []
    fl = sorted(enumerate(fillers), key=lambda x: (x[1]['pos'], x[0]))
    fl = [f for _, f in fl]
    idx = 0
    gapcost = [0] * (len(spine) + 1)
    def need(tokens, vtokens):
        nonlocal q, vq
        c = 0
        mx = -1
        for tk in tokens:
            if tk in q: mx = max(mx, q.index(tk))
        mv = -1
        for tk in vtokens:
            if tk in vq: mv = max(mv, len(vq) - 1 - vq[::-1].index(tk))
        w = []
        if mv >= 0:
            n = len(vq) - 1 - mv
            w.append('vmcnt(%d)' % min(n, 63)); vq = vq[mv + 1:]
        if mx >= 0:
            n = len(q) - 1 - mx
            assert n <= 15, 'lgkm overflow %d' % n
            w.append('lgkmcnt(%d)' % n)
            q = q[mx + 1:]
        if w:
            A('s_waitcnt ' + ' '.join(w)); c = 4
        return c
    def emit(f, g):
        nonlocal q, vq
        c = need(f.get('need', []), f.get('needvm', []))
        A(f['t'])
        if f.get('ds') is not None:
            toks = f['ds'] if isinstance(f['ds'], list) else [f['ds']]
            q.extend(toks)
            assert len(q) <= 24, 'too many outstanding lds %s' % q
        if f.get('vm') is not None:
            toks = f['vm'] if isinstance(f['vm'], list) else [f['vm']]
            vq.extend(toks)
        gapcost[g + 1] += f.get('cost', 4) + c
    while idx < len(fl) and fl[idx]['pos'] < 0:
        emit(fl[idx], -1); idx += 1
    for g, m in enumerate(spine):
        c = need(m.get('need', []), m.get('needvm', []))
        gapcost[g] += c
        A(m['t'])
        while idx < len(fl) and fl[idx]['pos'] < g + 1:
            emit(fl[idx], g); idx += 1
    while idx < len(fl):
        emit(fl[idx], len(spine) - 1); idx += 1
    if report is not None: report.append(gapcost)
    if vm_state is None: return q
    return q, vq

def pack(A, spine, fillers, lgkm_state=None, vm_state=None, budget=24, report=None, slack=1):
    q = list(lgkm_state) if lgkm_state else []
    vq = list(vm_state) if vm_state is not None else []
    n = len(spine)
    items = []
    for i, f in enumerate(fillers):
        f = dict(f); f['i'] = i
        f.setdefault('ready', -1); f.setdefault('due', n - 1); f.setdefault('stream', ('solo', i)); f.setdefault('cost', 4)
        items.append(f)
    streams = {}
    for f in items: streams.setdefault(f['stream'], []).append(f)
    for k in streams: streams[k].sort(key=lambda f: (f['pos'], f['i']))
    for k, l in streams.items():
        for j in range(len(l) - 2, -1, -1):
            l[j]['due'] = min(l[j]['due'], l[j + 1]['due'])
    gapcost = []
    def need(tokens, vtokens):
        nonlocal q, vq
        mx = -1
        for tk in tokens:
            if tk in q: mx = max(mx, q.index(tk))
        mv = -1
        for tk in vtokens:
            if tk in vq: mv = max(mv, len(vq) - 1 - vq[::-1].index(tk))
        w = []
        if mv >= 0:
            nn = len(vq) - 1 - mv
            assert nn <= 63
            w.append('vmcnt(%d)' % nn); vq = vq[mv + 1:]
        if mx >= 0:
            nn = len(q) - 1 - mx
            assert nn <= 15, 'lgkm overflow %d' % nn
            w.append('lgkmcnt(%d)' % nn); q = q[mx + 1:]
        if w:
            A('s_waitcnt ' + ' '.join(w)); return 2
        return 0
    def emit(f):
        nonlocal q, vq
        c = need(f.get('need', []), f.get('needvm', []))
        A(f['t'])
        if f.get('ds') is not None:
            toks = f['ds'] if isinstance(f['ds'], list) else [f['ds']]
            q.extend(toks)
            assert len(q) <= 25, 'too many outstanding lds %s' % q
        if f.get('vm') is not None:
            toks = f['vm'] if isinstance(f['vm'], list) else [f['vm']]
            vq.extend(toks)
        streams[f['stream']].pop(0)
        return f['cost'] + c
    def heads(g):
        return [l[0] for l in streams.values() if l and l[0]['ready'] <= g]
    carry = 0
    def fill(g, bud):
        used = 0
        while True:
            hs = heads(g)
            if not hs: break
            forced = [f for f in hs if f['due'] <= g]
            if forced:
                f = min(forced, key=lambda f: (f['due'], f['pos'])); used += emit(f); continue
            cand = [f for f in hs if f['pos'] <= g + 1 + slack + 0.999 and used + f['cost'] <= bud + 1]
            if not cand: break
            f = min(cand, key=lambda f: f['pos']); used += emit(f)
        return used
    u = fill(-1, 0) if any(f['due'] < 0 for f in items) else 0
    for g, m in enumerate(spine):
        c = need(m.get('need', []), m.get('needvm', []))
        A(m['t'])
        bud = budget + min(0, carry) - c
        used = fill(g, bud if g < n - 1 else 10 ** 6)
        carry = (bud - used) if (bud - used) < 0 else 0
        gapcost.append(used + c)
    assert all(not l for l in streams.values()), [ (k, len(l)) for k, l in streams.items() if l]
    if report is not None: report.append(gapcost)
    if vm_state is None: return q
    return q, vq
```

```python
import sys, os
from asmlib import *

NAME = 'sequential_preLN__compressed_kv_cla__moe_arch_mod__prompt'
XN_OFF = 0
KF_OFF = 4 << 20
VF_OFF = 20 << 20
CTX_OFF = 36 << 20
PART_OFF = 52 << 20
HN_OFF = 76 << 20
H_OFF = 80 << 20
RS_OFF = 84 << 20
Y_OFF = 85 << 20
FLG_OFF = 88 << 20
QDBG_OFF = 96 << 20
MFMA = 'v_mfma_f32_32x32x16_bf16'
OPT = dict(dbgq=0, stop=99, ts=0)
TS_OFF = 128 << 20
NSTAMP = [0]
SBASE = [80]
KIDX = [0]
def stamp_reset(base, kidx):
    NSTAMP[0] = 0; SBASE[0] = base; KIDX[0] = kidx
SCALL = [0]
def stamp(A):
    if not OPT['ts']: return
    c = SCALL[0]; SCALL[0] += 1
    if not (OPT.get('tsmask', 0x3f) >> c) & 1: return
    i = NSTAMP[0]; NSTAMP[0] += 1
    assert i < 6 or SBASE[0] != 90
    if OPT['ts'] == 3:
        A('s_memtime vcc\ns_memrealtime s[60:61]\ns_waitcnt lgkmcnt(0)')
        A('s_mov_b32 s%d, vcc_lo\ns_mov_b32 s%d, s60' % (SBASE[0] + 2 * i, SBASE[0] + 1 + 2 * i))
        return
    A(('s_memtime' if OPT['ts'] == 2 else 's_memrealtime') + ' s[%d:%d]' % (SBASE[0] + 2 * i, SBASE[0] + 1 + 2 * i))
    A('s_waitcnt lgkmcnt(0)')
def stamp_flush(A, S_W, ws_lo=18):
    if not OPT['ts']: return
    if OPT.get('dbgts'):
        l = A.lab('Lts')
        A('s_cmp_lg_u32 s%d, 0' % S_W)
        A('s_cbranch_scc1 ' + l)
        A('s_mov_b64 exec, 1')
        for i in range(NSTAMP[0]):
            A('v_mov_b32 v2, %d' % (i * 4)); A('v_mov_b32 v4, s%d' % (SBASE[0] + 2 * i))
            A('global_atomic_umax v2, v4, s[16:17] sc1')
            A('s_nop 1')
        A('s_mov_b64 exec, -1')
        A(l + ':')
        return
    l = A.lab('Lts')
    A('s_cmp_lg_u32 s%d, 0' % S_W)
    A('s_cbranch_scc1 ' + l)
    A('s_mov_b64 exec, -1')
    A('s_lshl_b32 s60, s2, 7')
    A('s_add_u32 s60, s60, 0x%x' % (TS_OFF + KIDX[0] * 65536))
    A('v_mov_b32 v2, s60')
    for i in range(NSTAMP[0]):
        A('v_mov_b32 v4, s%d' % (SBASE[0] + 2 * i)); A('v_mov_b32 v5, s%d' % (SBASE[0] + 1 + 2 * i))
        A('global_store_dwordx2 v2, v[4:5], s[%d:%d] offset:%d' % (ws_lo, ws_lo + 1, i * 8))
        A('s_nop 1')
    A(l + ':')

def srd(A, d, base_lo, base_hi, off_sgpr, size):
    if off_sgpr is None:
        A('s_mov_b32 s%d, s%d' % (d, base_lo)); A('s_mov_b32 s%d, s%d' % (d + 1, base_hi))
    else:
        A('s_add_u32 s%d, s%d, %s' % (d, base_lo, off_sgpr)); A('s_addc_u32 s%d, s%d, 0' % (d + 1, base_hi))
    A('s_mov_b32 s%d, 0x%x' % (d + 2, size)); A('s_mov_b32 s%d, 0x20000' % (d + 3))

def spin_wait(A, dbg_pair, voff, vtmp, target, stmp, scnt):
    l0 = A.lab('Lspin'); l1 = A.lab('Lspind')
    A('s_mov_b32 s%d, 0' % scnt)
    A(l0 + ':')
    A('global_load_dword v%d, v%d, %s sc1' % (vtmp, voff, dbg_pair))
    A('s_waitcnt vmcnt(0)')
    A('v_readfirstlane_b32 s%d, v%d' % (stmp, vtmp))
    A('s_nop 3')
    A('s_cmp_ge_u32 s%d, %d' % (stmp, target))
    A('s_cbranch_scc1 ' + l1)
    A('s_add_u32 s%d, s%d, 1' % (scnt, scnt))
    A('s_cmp_lt_u32 s%d, 0x40000' % scnt)
    A('s_sleep 2')
    A('s_cbranch_scc1 ' + l0)
    A(l1 + ':')

S_H, S_J, S_W = 20, 21, 22
SRD_CKV, SRD_WUK, SRD_WUV, SRD_WQ, SRD_XN, SRD_KF, SRD_VF, SRD_CTX, SRD_X = 24, 28, 32, 36, 40, 44, 48, 52, 56

def ka_prologue(A):
    A('s_cmp_ge_u32 s2, 256')
    A('s_cbranch_scc1 LA_end')
    A('s_load_dwordx4 s[4:7], s[0:1], 0')
    A('s_load_dwordx4 s[8:11], s[0:1], 16')
    A('s_load_dwordx2 s[12:13], s[0:1], 32')
    A('s_load_dwordx4 s[16:19], s[0:1], 96')
    A('v_and_b32 v1, 63, v0')
    A('v_lshrrev_b32 v2, 6, v0')
    A('s_and_b32 s60, s2, 7')
    A('s_lshl_b32 s60, s60, 2')
    A('s_bfe_u32 s61, s2, 0x20003')
    A('s_add_u32 s%d, s60, s61' % S_H)
    A('s_lshr_b32 s%d, s2, 5' % S_J)
    A('v_readfirstlane_b32 s%d, v2' % S_W)
    A('s_waitcnt lgkmcnt(0)')
    A('s_lshl_b32 s60, s%d, 18' % S_J)
    srd(A, SRD_CKV, 6, 7, 's60', 262144)
    A('s_lshl_b32 s60, s%d, 8' % S_H)
    A('s_sub_u32 s61, 0x400000, s60')
    for d, lo in ((SRD_WUK, 10), (SRD_WUV, 12)):
        srd(A, d, lo, lo + 1, 's60', 0)
        A('s_mov_b32 s%d, s61' % (d + 2))
    srd(A, SRD_WQ, 8, 9, 's60', 0)
    A('s_sub_u32 s%d, 0x500000, s60' % (SRD_WQ + 2))
    srd(A, SRD_XN, 18, 19, None, 2048 * 640 * 2)
    A('s_lshl_b32 s60, s%d, 19' % S_H)
    A('s_add_u32 s61, s60, 0x%x' % KF_OFF)
    srd(A, SRD_KF, 18, 19, 's61', 524288)
    A('s_add_u32 s61, s60, 0x%x' % VF_OFF)
    srd(A, SRD_VF, 18, 19, 's61', 524288)
    A('s_mov_b32 s61, 0x%x' % CTX_OFF)
    srd(A, SRD_CTX, 18, 19, 's61', 16 << 20)
    srd(A, SRD_X, 4, 5, None, 2048 * 640 * 2)

V_LANE = 1
V_OFFC = 2
V_OFFW = 6
V_ADC = 10
V_ADW = 18
V_L16 = 26
V_T = 27

def voffw_setup(A):
    A('v_lshlrev_b32 v%d, 4, v1' % V_L16)
    A('v_lshrrev_b32 v27, 4, v1')
    A('v_and_b32 v28, 15, v1')
    A('v_lshlrev_b32 v29, 2, v27')
    A('v_xor_b32 v28, v28, v29')
    A('v_lshlrev_b32 v28, 4, v28')
    A('v_lshlrev_b32 v27, 13, v27')
    A('v_add_u32 v27, v27, v28')
    for i in range(4):
        A('v_add_u32 v%d, %d, v27' % (V_OFFW + i, i * (4 * 8192 - 1024)))

def p1_setup(A):
    A('v_lshlrev_b32 v%d, 4, v1' % V_L16)
    A('v_lshrrev_b32 v27, 3, v1')
    A('v_and_b32 v28, 7, v1')
    A('v_lshrrev_b32 v29, 1, v27')
    for i in range(4):
        A('v_add_u32 v30, %d, v29' % (4 * i))
        A('v_and_b32 v30, 7, v30')
        A('v_xor_b32 v30, v30, v28')
        A('v_lshlrev_b32 v30, 4, v30')
        A('v_add_u32 v31, %d, v27' % (7 * i))
        A('v_lshlrev_b32 v31, 10, v31')
        A('v_add_u32 v%d, v30, v31' % (V_OFFC + i))
    voffw_setup(A)
    A('v_and_b32 v27, 31, v1')
    A('v_lshrrev_b32 v28, 5, v1')
    A('v_lshrrev_b32 v29, 1, v27')
    A('v_and_b32 v29, 7, v29')
    A('v_lshlrev_b32 v30, 7, v27')
    A('s_and_b32 s60, s%d, 1' % S_W)
    A('s_lshl_b32 s60, s60, 14')
    A('v_add_u32 v30, s60, v30')
    for sidx in range(4):
        A('v_add_u32 v31, %d, v28' % (2 * sidx))
        A('v_xor_b32 v31, v31, v29')
        A('v_lshlrev_b32 v31, 4, v31')
        A('v_add_u32 v%d, v30, v31' % (V_ADC + sidx))
        A('v_add_u32 v%d, 0x10000, v%d' % (V_ADC + 4 + sidx, V_ADC + sidx))
    wfrag_lane_base(A, 27, 28, 29)
    A('s_lshr_b32 s60, s%d, 1' % S_W)
    A('s_lshl_b32 s60, s60, 14')
    A('s_add_u32 s60, s60, 32768')
    A('v_add_u32 v27, s60, v27')
    for dt in range(4):
        A('v_xor_b32 v29, %d, v28' % dt)
        A('v_lshlrev_b32 v29, 6, v29')
        A('v_add_u32 v%d, v27, v29' % (V_ADW + dt))
        A('v_add_u32 v%d, 0x10000, v%d' % (V_ADW + 4 + dt, V_ADW + dt))

def wfrag_lane_base(A, vo, vr_, vt):
    A('v_lshrrev_b32 v%d, 2, v1' % vr_)
    A('v_and_b32 v%d, 3, v%d' % (vr_, vr_))
    A('v_lshrrev_b32 v%d, 5, v1' % vo)
    A('v_lshlrev_b32 v%d, 3, v%d' % (vo, vo))
    A('v_add_u32 v%d, v%d, v%d' % (vo, vo, vr_))
    A('v_lshlrev_b32 v%d, 8, v%d' % (vo, vo))
    A('v_lshrrev_b32 v%d, 4, v1' % vt)
    A('v_and_b32 v%d, 1, v%d' % (vt, vt))
    A('v_lshlrev_b32 v%d, 5, v%d' % (vt, vt))
    A('v_add_u32 v%d, v%d, v%d' % (vo, vo, vt))
    A('v_and_b32 v%d, 3, v1' % vt)
    A('v_lshlrev_b32 v%d, 3, v%d' % (vt, vt))
    A('v_add_u32 v%d, v%d, v%d' % (vo, vo, vt))

def p1_dma_group(grp, buf):
    out = []
    if grp < 2:
        pre = ['s_add_u32 m0, s62, %d' % (buf * 65536 + grp * 4096), 's_add_u32 s66, s63, %d' % (grp * 32768)]
        for i in range(4):
            out.append('buffer_load_dwordx4 v%d, s[%d:%d], s66 offen offset:%d lds' % (V_OFFC + i, SRD_CKV, SRD_CKV + 3, i * 1024))
    else:
        sd = SRD_WUK if grp == 2 else SRD_WUV
        pre = ['s_add_u32 m0, s65, %d' % (buf * 65536 + 32768 + (grp - 2) * 16384), 's_nop 0']
        for i in range(4):
            out.append('buffer_load_dwordx4 v%d, s[%d:%d], s64 offen offset:%d lds' % (V_OFFW + i, sd, sd + 3, i * 1024))
    return pre, out

def p1_dma_advance():
    return ['s_add_u32 s63, s63, 128', 's_add_u32 s64, s64, 524288']

def acc1(idx):
    return ('v', 64 + idx * 16) if idx < 12 else ('a', (idx - 12) * 16)
F1 = 64

def p1_frag_reads(fset, buf, sidx):
    b = F1 + fset * 32
    out = []
    for tt in range(4):
        out.append(('ds_read_b128 %s, v%d offset:%d' % (ar(b + tt * 4, 4), V_ADC + buf * 4 + sidx, tt * 4096), ('C', fset, tt)))
    for dt in range(4):
        for u in range(2):
            out.append(('ds_read_b64_tr_b16 %s, v%d offset:%d' % (ar(b + 16 + dt * 4 + u * 2, 2), V_ADW + buf * 4 + dt, sidx * 4096 + u * 1024), ('W', fset, dt, u)))
    return out

def p1_mfmas(fset, isV, first):
    b = F1 + fset * 32
    sp = []
    for dt in range(4):
        for tt in range(4):
            idx = tt * 4 + dt
            f, r = acc1(idx)
            cf = ar(b + tt * 4, 4); wf = ar(b + 16 + dt * 4, 4)
            Aop, Bop = (cf, wf) if isV else (wf, cf)
            c = '0' if first else R(f, r, 16)
            sp.append(dict(t='%s %s, %s, %s, %s' % (MFMA, R(f, r, 16), Aop, Bop, c), need=[('C', fset, tt), ('W', fset, dt, 0), ('W', fset, dt, 1)]))
    return sp

def p1_block(A, q, fset, isV, first, reads, dmas, pre=None):
    sp = p1_mfmas(fset, isV, first)
    fl = []
    if pre:
        for t in pre: fl.append(dict(t=t, pos=-1, cost=4))
    n = len(reads)
    for i, (t, tok) in enumerate(reads):
        fl.append(dict(t=t, pos=0.1 + i * 13.0 / max(n, 1), cost=8, ds=tok))
    nd = len(dmas)
    for i, t in enumerate(dmas):
        fl.append(dict(t=t, pos=0.5 + i * 15.0 / max(nd, 1), cost=18))
    return interleave(A, sp, fl, q)

def phase1_loop(A, isV, hooks):
    tag = 'V' if isV else 'K'
    q = []
    for t, tok in p1_frag_reads(0, 0, 0):
        A(t); q.append(tok)
    A('s_mov_b32 s70, 0')
    if OPT.get('p1s'): A('s_mov_b32 s82, 0')
    def blk(fset, first, reads, dm):
        nonlocal q
        if OPT.get('p1s'):
            A('s_memtime s[80:81]\ns_waitcnt lgkmcnt(0)\ns_mov_b32 m0, s82\ns_add_u32 s82, s82, 1\nv_writelane_b32 v63, s80, m0'); q = []
        q = p1_block(A, q, fset, isV, first, reads, dm)
    def full_stage(buf, first, has_next, has_next2, extra0=(), extra1=(), extra2=(), extra3=(), post_bar=None, pre_wait=None, vmw=0):
        nonlocal q
        dm = []
        if has_next and not (first and OPT.get('w1e', 1)):
            for grp in (2, 3):
                pre, ins = p1_dma_group(grp, buf ^ 1)
                dm.append('\n'.join(pre + [ins[0]])); dm += ins[1:]
            dm[-1] = dm[-1] + '\ns_add_u32 s64, s64, 524288'
        blk(0, first, p1_frag_reads(1, buf, 1), dm + list(extra0))
        blk(1, False, p1_frag_reads(0, buf, 2), list(extra1))
        blk(0, False, p1_frag_reads(1, buf, 3), list(extra2))
        A('s_waitcnt vmcnt(%d) lgkmcnt(0)' % vmw if has_next else 's_waitcnt lgkmcnt(0)')
        q = []
        if pre_wait: pre_wait(A)
        A('s_barrier')
        if post_bar: post_bar(A)
        dm = []
        if has_next2:
            for grp in (0, 1):
                pre, ins = p1_dma_group(grp, buf)
                dm.append('\n'.join(pre + [ins[0]])); dm += ins[1:]
            dm[-1] = dm[-1] + '\ns_add_u32 s63, s63, 128'
        reads = p1_frag_reads(0, buf ^ 1, 0) if has_next else []
        blk(1, False, reads, dm + list(extra3))
    full_stage(0, True, True, True, post_bar=hooks['after_bar0'], extra1=hooks['warm'], vmw=len(hooks['warm']))
    gw = gwarm_loads() if OPT.get('fuse') and OPT.get('gwarm', 1) == 1 else []
    full_stage(1, False, True, True, extra1=hooks['warm'] + gw, vmw=len(hooks['warm']) + len(gw))
    lp = 'LP1%s_loop' % tag
    A('.p2align 6')
    A(lp + ':')
    q0 = list(q)
    full_stage(0, False, True, True, extra1=hooks['warm'], vmw=len(hooks['warm']))
    full_stage(1, False, True, True, extra1=hooks['warm'], vmw=len(hooks['warm']))
    assert q == q0 or OPT.get('p1s'), (q, q0)
    A('s_add_u32 s70, s70, 1')
    A('s_cmp_lt_u32 s70, 2')
    A('s_cbranch_scc1 ' + lp)
    full_stage(0, False, True, False, extra1=hooks['st6_fill'], extra3=hooks['st1_fill'], pre_wait=hooks['st6_check'])
    x = hooks['st7_fill']
    n = len(x)
    full_stage(1, False, False, False, extra0=x[:n // 3], extra1=x[n // 3:2 * n // 3], extra2=x[2 * n // 3:], extra3=hooks['st7_s3'])
    if OPT.get('p1s'):
        A('s_memtime s[80:81]\ns_waitcnt lgkmcnt(0)\ns_mov_b32 m0, s82\nv_writelane_b32 v63, s80, m0')
        A('s_lshl_b32 s60, s2, 10\ns_lshl_b32 s61, s%d, 8\ns_add_u32 s60, s60, s61\ns_add_u32 s60, s60, 0x%x' % (S_W, TS_OFF + (3 << 20)))
        A('v_lshlrev_b32 v62, 2, v1\nv_add_u32 v62, s60, v62\nglobal_store_dword v62, v63, s[18:19]\ns_nop 2')
    return q

def packreg(i):
    return ('v', 32 + 4 * i) if i < 24 else ('a', 96 + 4 * (i - 24))

def phase1_epilogue(A, isV):
    A('s_nop 15')
    for tt in range(4):
        for dt in range(4):
            for half in range(2):
                idx = tt * 4 + dt
                slot = (tt * 8 + half * 4 + dt) if isV else (tt * 8 + 2 * dt + half)
                f, r = acc1(idx)
                pf, pr = packreg(slot)
                if f == 'a':
                    tr = 128 + ((dt * 2 + half) % 2) * 8
                    for e in range(8):
                        A('v_accvgpr_read_b32 v%d, a%d' % (tr + e, r + 8 * half + e))
                    base = tr
                else:
                    base = r + 8 * half
                if pf == 'v':
                    for j in range(4):
                        A('v_cvt_pk_bf16_f32 v%d, v%d, v%d' % (pr + j, base + 2 * j, base + 2 * j + 1))
                else:
                    tp = 144 + ((dt * 2 + half) % 2) * 4
                    for j in range(4):
                        A('v_cvt_pk_bf16_f32 v%d, v%d, v%d' % (tp + j, base + 2 * j, base + 2 * j + 1))
                    for j in range(4):
                        A('v_accvgpr_write_b32 a%d, v%d' % (pr + j, tp + j))
    sd = SRD_VF if isV else SRD_KF
    for k in range(3): A('s_mov_b32 s%d, s%d' % (4 + k, sd + k))
    A('s_mov_b32 s7, 0x20000')
    A('s_lshl_b32 s67, s%d, 16' % S_J)
    A('s_and_b32 s68, s%d, 1' % S_W)
    A('s_lshl_b32 s68, s68, 15')
    A('s_add_u32 s67, s67, s68')

def kv_store(i):
    f, r = packreg(i)
    pre = 's_add_u32 s69, s67, %d\n' % ((i // 4) * 4096) if i % 4 == 0 else ''
    return pre + 'buffer_store_dwordx4 %s, v%d, s[4:7], s69 offen offset:%d%s' % (R(f, r, 4), V_L16, (i % 4) * 1024, ' sc1' if OPT.get('kvsc1') else (' nt' if OPT.get('kvnt') else ''))

def phase0(A):
    pass

def ln_load(A):
    A('s_lshl_b32 s60, s2, 3')
    A('s_lshl_b32 s61, s%d, 1' % S_W)
    A('s_add_u32 s60, s60, s61')
    A('v_lshrrev_b32 v36, 5, v1')
    A('v_add_u32 v36, s60, v36')
    A('v_and_b32 v37, 31, v1')
    A('s_movk_i32 s61, 1280')
    A('v_mul_lo_u32 v38, v36, s61')
    A('v_lshlrev_b32 v39, 4, v37')
    A('v_add_u32 v38, v38, v39')
    A('v_add_u32 v39, 1024, v38')
    A('v_cmp_gt_u32 vcc, 16, v37')
    A('v_mov_b32 v40, 0x7ffffff0')
    A('s_nop 0')
    A('v_cndmask_b32 v39, v40, v39, vcc')
    A('buffer_load_dwordx4 v[44:47], v38, s[%d:%d], 0 offen' % (SRD_X, SRD_X + 3))
    A('buffer_load_dwordx4 v[48:51], v38, s[%d:%d], 0 offen offset:512' % (SRD_X, SRD_X + 3))
    A('buffer_load_dwordx4 v[52:55], v39, s[%d:%d], 0 offen' % (SRD_X, SRD_X + 3))

def half_reduce_add(A, vx, vt):
    for sh in (8, 4, 2, 1):
        A('s_nop 1')
        A('v_add_f32_dpp v%d, v%d, v%d row_ror:%d row_mask:0xf bank_mask:0xf' % (vx, vx, vx, sh))
    A('ds_swizzle_b32 v%d, v%d offset:0x401F' % (vt, vx))
    A('s_waitcnt lgkmcnt(0)')
    A('v_add_f32 v%d, v%d, v%d' % (vx, vx, vt))

def ln_compute(A, nvm_after):
    A('s_waitcnt vmcnt(%d)' % nvm_after)
    for i in range(12):
        A('v_lshlrev_b32 v%d, 16, v%d' % (64 + 2 * i, 44 + i))
        A('v_and_b32 v%d, 0xffff0000, v%d' % (65 + 2 * i, 44 + i))
    A('v_add_f32 v56, v64, v65')
    for i in range(2, 24):
        A('v_add_f32 v56, v56, v%d' % (64 + i))
    half_reduce_add(A, 56, 57)
    A('v_mul_f32 v56, 0x3acccccd, v56')
    for i in range(24):
        A('v_sub_f32 v%d, v%d, v56' % (64 + i, 64 + i))
    A('v_cmp_gt_u32 vcc, 16, v37')
    A('s_nop 1')
    for i in range(16, 24):
        A('v_cndmask_b32 v%d, 0, v%d, vcc' % (64 + i, 64 + i))
    A('v_mul_f32 v57, v64, v64')
    for i in range(1, 24):
        A('v_fmac_f32 v57, v%d, v%d' % (64 + i, 64 + i))
    half_reduce_add(A, 57, 58)
    A('v_mov_b32 v58, 0x3727c5ac')
    A('v_fmac_f32 v58, 0x3acccccd, v57')
    A('v_rsq_f32 v58, v58')
    A('s_nop 0')
    A('v_mul_f32 v58, 0x3e0293ee, v58')
    for i in range(24):
        A('v_mul_f32 v%d, v%d, v58' % (64 + i, 64 + i))
    for i in range(12):
        A('v_cvt_pk_bf16_f32 v%d, v%d, v%d' % (44 + i, 64 + 2 * i, 65 + 2 * i))
    A('v_lshrrev_b32 v59, 5, v36')
    A('v_mul_u32_u24 v59, 40, v59')
    A('v_lshrrev_b32 v60, 1, v37')
    A('v_add_u32 v59, v59, v60')
    A('v_lshlrev_b32 v59, 6, v59')
    A('v_and_b32 v60, 1, v37')
    A('v_lshlrev_b32 v60, 5, v60')
    A('v_and_b32 v61, 31, v36')
    A('v_add3_u32 v59, v59, v60, v61')
    A('v_lshlrev_b32 v59, 4, v59')
    A('v_add_u32 v60, 0x4000, v59')
    A('v_add_u32 v61, 0x8000, v59')
    A('v_mov_b32 v62, 0x7ffffff0')
    A('v_cndmask_b32 v61, v62, v61, vcc')
    for c, vo in ((0, 59), (1, 60), (2, 61)):
        A('buffer_store_dwordx4 v[%d:%d], v%d, s[%d:%d], 0 offen sc1' % (44 + 4 * c, 47 + 4 * c, vo, SRD_XN, SRD_XN + 3))

def signal(A, idx_sgpr_expr_lines, vtmp):
    l = A.lab('Lsig')
    A('s_waitcnt vmcnt(0)')
    A('s_barrier')
    A('s_cmp_lg_u32 s%d, 0' % S_W)
    A('s_cbranch_scc1 ' + l)
    A(idx_sgpr_expr_lines)
    A('s_lshl_b32 s60, s60, 2')
    A('v_mov_b32 v%d, s60' % vtmp)
    A('v_mov_b32 v%d, 1' % (vtmp + 1))
    A('s_mov_b64 s[60:61], exec')
    A('s_mov_b64 exec, 1')
    A('global_atomic_add v%d, v%d, s[16:17] sc1' % (vtmp, vtmp + 1))
    A('s_mov_b64 exec, s[60:61]')
    A(l + ':')

def byte_flag_addr(A, idx_sgpr, base_dw):
    A('s_lshr_b32 s60, s%d, 2' % idx_sgpr)
    A('s_add_u32 s60, s60, %d' % base_dw)
    A('s_lshl_b32 s60, s60, 2')
    A('s_and_b32 s61, s%d, 3' % idx_sgpr)
    A('s_lshl_b32 s61, s61, 3')

def signal_now(A, idx_sgpr, base_dw, vtmp, release=None, bit_sgpr=None):
    l = A.lab('Lsig')
    A('s_cmp_lg_u32 s%d, 0' % S_W)
    A('s_cbranch_scc1 ' + l)
    if release: release(A)
    byte_flag_addr(A, idx_sgpr, base_dw)
    if bit_sgpr is not None: A('s_add_u32 s61, s61, s%d' % bit_sgpr)
    A('s_lshl_b32 s61, 1, s61')
    A('v_mov_b32 v%d, s60' % vtmp)
    A('v_mov_b32 v%d, s61' % (vtmp + 1))
    A('s_mov_b64 s[60:61], exec')
    A('s_mov_b64 exec, 1')
    A('global_atomic_add v%d, v%d, s[16:17] sc1' % (vtmp, vtmp + 1))
    A('s_mov_b64 exec, s[60:61]')
    A(l + ':')

S_SAME = 23
def flag_store(A, off_lines, val, vtmp):
    A(off_lines)
    A('s_add_u32 s60, s60, 0x%x' % FLG_OFF)
    A('v_mov_b32 v%d, s60' % vtmp)
    A('v_mov_b32 v%d, %s' % (vtmp + 1, val))
    A('s_mov_b64 s[60:61], exec')
    A('s_mov_b64 exec, 1')
    A('global_store_dword v%d, v%d, s[18:19] sc1' % (vtmp, vtmp + 1))
    A('s_mov_b64 exec, s[60:61]')
KVF_ADDR = 's_lshl_b32 s60, s%d, 7\ns_lshl_b32 s61, s%d, 2\ns_add_u32 s60, s60, s61' % (S_H, S_J)

def xc_signal(A):
    l = A.lab('Lxc')
    A('s_getreg_b32 s14, hwreg(HW_REG_XCC_ID)')
    A('s_and_b32 s14, s14, 7')
    A('s_lshl_b32 s14, s14, 2')
    A('s_cmp_lg_u32 s%d, 0' % S_W)
    A('s_cbranch_scc1 ' + l)
    A('s_add_u32 s60, s%d, 16' % S_H); A('s_lshl_b32 s60, s60, 2')
    A('s_lshl_b32 s61, 1, s14')
    A('v_mov_b32 v27, s60'); A('v_mov_b32 v28, s61')
    A('s_mov_b64 s[60:61], exec'); A('s_mov_b64 exec, 1')
    A('global_atomic_add v27, v28, s[16:17] sc1')
    A('s_mov_b64 exec, s[60:61]')
    flag_store(A, KVF_ADDR, '0', 27)
    if OPT.get('fuse'):
        import gen_fuse
        gen_fuse.zero_flags(A)
    A(l + ':')

def warm_setup(A):
    for k in range(4):
        A('s_cmp_eq_u32 s%d, 1' % S_W); A('s_cselect_b32 s%d, s%d, s%d' % (4 + k, SRD_WUK + k, SRD_CKV + k))
        A('s_cmp_eq_u32 s%d, 2' % S_W); A('s_cselect_b32 s%d, s%d, s%d' % (4 + k, SRD_WUV + k, 4 + k))
        A('s_cmp_eq_u32 s%d, 3' % S_W); A('s_cselect_b32 s%d, s%d, s%d' % (4 + k, SRD_WQ + k, 4 + k))
    A('s_mov_b32 s7, 0x20000')
    wd = OPT.get('wd', 1)
    A('s_mov_b32 s9, 524288'); A('s_mov_b32 s8, %d' % (524288 * wd))
    A('s_cmp_eq_u32 s%d, 0' % S_W); A('s_cselect_b32 s9, 128, s9'); A('s_cselect_b32 s8, %d, s8' % (128 * wd))
    A('s_cmp_eq_u32 s%d, 3' % S_W); A('s_cselect_b32 s9, 655360, s9'); A('s_cselect_b32 s8, 0, s8')
    A('s_and_b32 s60, s%d, 3' % S_H); A('s_lshl_b32 s60, s60, 6')
    A('v_add_u32 v33, s60, v1'); A('v_lshlrev_b32 v33, 10, v33')
    A('s_lshl_b32 s60, s%d, 3' % S_J); A('s_mul_i32 s61, s%d, 10' % S_J)
    A('s_cmp_eq_u32 s%d, 3' % S_W); A('s_cselect_b32 s60, s61, s60'); A('s_cselect_b32 s61, 20, 16')
    A('v_lshrrev_b32 v34, 1, v1'); A('v_add_u32 v34, s60, v34'); A('v_lshlrev_b32 v34, 13, v34')
    A('v_and_b32 v35, 1, v1'); A('v_lshlrev_b32 v35, 7, v35'); A('v_add_u32 v34, v34, v35')
    A('v_mov_b32 v35, 0x7ffffff0')
    A('v_cmp_gt_u32 vcc, s61, v1'); A('s_nop 1'); A('v_cndmask_b32 v34, v35, v34, vcc')
    A('s_cmp_eq_u32 s%d, 0' % S_W); A('s_cselect_b64 vcc, -1, 0'); A('s_nop 1')
    A('v_cndmask_b32 v33, v34, v33, vcc')
def code_prefetch(A, n):
    A('s_getpc_b64 s[80:81]')
    A('LA_pc:')
    A('s_sub_u32 s80, s80, LA_pc-%s_kernel' % NAME)
    A('s_subb_u32 s81, s81, 0')
    A('s_mul_i32 s60, s%d, %d' % (S_W, n * 8192))
    A('v_lshlrev_b32 v41, 7, v1')
    A('v_add_u32 v41, s60, v41')
    A('v_mov_b32 v42, LA_codeend-%s_kernel-4' % NAME)
    for i in range(n):
        A('v_min_u32 v43, v41, v42')
        A('global_load_dword v34, v43, s[80:81]')
        if i + 1 < n: A('v_add_u32 v41, 8192, v41')

def code_prefetch(A, n):
    A('s_getpc_b64 s[80:81]')
    A('LA_pc:')
    A('s_sub_u32 s80, s80, LA_pc-%s_kernel' % NAME)
    A('s_subb_u32 s81, s81, 0')
    A('s_mul_i32 s60, s%d, %d' % (S_W, n * 8192))
    A('v_lshlrev_b32 v41, 7, v1')
    A('v_add_u32 v41, s60, v41')
    A('v_mov_b32 v42, LA_codeend-%s_kernel-4' % NAME)
    for i in range(n):
        A('v_min_u32 v43, v41, v42')
        A('global_load_dword v34, v43, s[80:81]')
        if i + 1 < n: A('v_add_u32 v41, 8192, v41')

def gwarm_setup(A):
    A('s_load_dwordx2 s[76:77], s[0:1], 40')
    A('s_load_dwordx2 s[78:79], s[0:1], 64')
    A('s_load_dwordx2 s[80:81], s[0:1], 72')
    A('s_load_dwordx2 s[68:69], s[0:1], 80')
    A('s_lshl_b32 s60, s2, 2'); A('s_add_u32 s60, s60, s%d' % S_W); A('s_lshl_b32 s60, s60, 6')
    A('v_add_u32 v41, s60, v1'); A('v_lshlrev_b32 v41, 7, v41')
    A('v_min_u32 v42, 0x4fffc0, v41')
    A('v_min_u32 v43, 0x21bfc0, v41')
def gwarm_loads():
    d = 16 if OPT.get('gwarm', 1) == 2 else 34
    return ['global_load_dword v%d, v42, s[76:77]' % d, 'global_load_dword v%d, v43, s[78:79]' % d, 'global_load_dword v%d, v43, s[80:81]' % d, 'global_load_dword v%d, v43, s[68:69]' % d]

def warm_load():
    return 'buffer_load_dword v34, v33, s[4:7], s8 offen\ns_add_u32 s8, s8, s9'

def kernel_a(A):
    K = NAME + '_kernel'
    import gen_attn
    A('.globl %s\n.p2align 8\n.type %s,@function\n%s:' % (K, K, K))
    ka_prologue(A)
    stamp_reset(90, 0)
    if OPT.get('dbgts'):
        for i in range(90, 102): A('s_mov_b32 s%d, 0' % i)
    stamp(A)
    A('s_mov_b32 s82, 0\ns_mov_b32 s83, 0')
    ln_load(A)
    W = OPT.get('warm', 1)
    WF = OPT.get('wfirst', 0)
    NW0 = 3 if WF else 2
    if W and WF == 1:
        warm_setup(A)
        for i in range(NW0): A(warm_load())
    p1_setup(A)
    A('s_lshl_b32 s62, s%d, 13' % S_W)
    A('s_lshl_b32 s63, s%d, 16' % S_W)
    A('s_lshl_b32 s64, s%d, 17' % S_W)
    A('s_lshl_b32 s65, s%d, 12' % S_W)
    for grp in range(4):
        pre, ins = p1_dma_group(grp, 0)
        A('\n'.join(pre + ins))
    A('\n'.join(p1_dma_advance()))
    if W and WF == 2:
        warm_setup(A)
        for i in range(NW0): A(warm_load())
    W1E = OPT.get('w1e', 1)
    for grp in ((0, 1, 2, 3) if W1E else (0, 1)):
        pre, ins = p1_dma_group(grp, 1)
        A('\n'.join(pre + ins))
    A('s_add_u32 s63, s63, 128')
    if W1E: A('s_add_u32 s64, s64, 524288')
    if W and not WF:
        warm_setup(A)
        for i in range(NW0): A(warm_load())
    NCP = OPT.get('cpf', 0)
    if NCP: code_prefetch(A, NCP)
    NSE = 0
    if OPT.get('tlbw', 0):
        A('v_lshlrev_b32 v41, 21, v1')
        A('v_min_u32 v41, 0x5e00000, v41')
        A('global_load_dword v34, v41, s[18:19]')
        NSE += 1
    xc_signal(A)
    if OPT.get('fuse'): gwarm_setup(A)
    gen_attn.phase2_early(A)
    if OPT.get('fuse') and OPT.get('gwarm', 1) == 3:
        A('s_waitcnt lgkmcnt(0)')
        for t in gwarm_loads(): A(t)
        NSE += 4
    nyoung = 16 + (16 if W1E else 8) + (NW0 if W else 0) + NCP + NSE
    ln_compute(A, nyoung)
    A('s_waitcnt vmcnt(%d)' % ((16 if W1E else 8) + ((NW0 if W else 0) if WF != 1 else 0) + NCP + 3 + NSE))
    A('s_barrier')
    stamp(A)
    hooks = gen_attn.p1_hooks(A)
    A('s_lshr_b32 s15, s2, 4')
    hooks['after_bar0'] = lambda A: signal_now(A, 15, 8, 27)
    hooks['warm'] = [warm_load()] if W else []
    if OPT.get('fuse') and OPT.get('gwarm', 1) == 2:
        hooks['st7_s3'] = hooks['st7_s3'] + gwarm_loads()
    if OPT.get('fuse'):
        import gen_fuse
        hooks['st6_fill'] = hooks['st6_fill'] + gen_fuse.hn_sentinel_list()
    A('s_cmp_ge_u32 s%d, 2' % S_W)
    A('s_cbranch_scc1 LA_p1V')
    phase1_loop(A, False, hooks)
    phase1_epilogue(A, False)
    A('s_branch LA_p1done')
    A('LA_p1V:')
    phase1_loop(A, True, hooks)
    phase1_epilogue(A, True)
    A('LA_p1done:')
    stamp(A)
    gen_attn.phase23(A, OPT)
    if OPT.get('fuse'):
        import gen_fuse
        gen_fuse.tail(A)
    stamp(A)
    stamp_flush(A, S_W)
    if OPT.get('xsleep'):
        l = A.lab('Lxs'); l2 = A.lab('Lxs')
        A('s_cmp_lg_u32 s2, 60'); A('s_cbranch_scc1 ' + l2)
        A('s_memrealtime s[60:61]'); A('s_waitcnt lgkmcnt(0)'); A('s_add_u32 s62, s60, %d' % OPT['xsleep'])
        A(l + ':'); A('s_memrealtime s[60:61]'); A('s_waitcnt lgkmcnt(0)'); A('s_sub_u32 s63, s62, s60'); A('s_cmp_gt_i32 s63, 0'); A('s_cbranch_scc1 ' + l)
        A(l2 + ':')
    A('LA_end:')
    A('s_endpgm')
    A('LA_codeend:')
    A('LA_codeend:')

def descriptor(A, K, vgpr, accum, sgpr=102):
    A('.p2align 6')
    A('.amdhsa_kernel %s' % K)
    A('  .amdhsa_next_free_vgpr %d\n  .amdhsa_next_free_sgpr %d\n  .amdhsa_accum_offset %d' % (vgpr, sgpr, accum))
    A('  .amdhsa_group_segment_fixed_size 0\n  .amdhsa_kernarg_size 112\n  .amdhsa_user_sgpr_count 2')
    A('  .amdhsa_user_sgpr_kernarg_segment_ptr 1\n  .amdhsa_system_sgpr_workgroup_id_x 1')
    A('.end_amdhsa_kernel')

HEADER = open('cdna_kernels/%s.s.ref' % NAME).read().split('; Override launch')[0] if os.path.exists('cdna_kernels/%s.s.ref' % NAME) else ''

def main():
    out = sys.argv[1]
    for x in sys.argv[2:]:
        k, val = x.split('='); OPT[k] = int(val)
    A = Asm()
    launches = [(NAME + '_kernel', 256, 256, 163840)]
    kernels = [(NAME + '_kernel', 512, 256)]
    if OPT['stop'] >= 10 and not OPT.get('fuse'):
        import gen_tail
        launches += gen_tail.launches(OPT)
        kernels += gen_tail.kernels(OPT)
    hdr = HEADER
    if len(launches) == 1 and not OPT.get('list'):
        k, g, b, lds = launches[0]
        hdr += '; @launch grid=(%d,1,1) block=(%d,1,1) lds=%d\n' % (g, b, lds)
    else:
        for (k, g, b, lds) in launches:
            hdr += '; @launch kernel=%s grid=(%d,1,1) block=(%d,1,1) lds=%d\n' % (k, g, b, lds)
    A('.amdgcn_target "amdgcn-amd-amdhsa--gfx950"\n.text')
    kernel_a(A)
    if OPT['stop'] >= 10 and not OPT.get('fuse'):
        gen_tail.emit(A, OPT)
    A('.section .rodata,"a"')
    for (k, vg, ac) in kernels:
        descriptor(A, k, vg, ac)
    msgs = check_hazards(A.L)
    for m in msgs[:40]: print(m)
    print('hazard msgs: %d, lines: %d' % (len(msgs), len(A.L)))
    open(out, 'w').write(hdr + A.text())

if __name__ == '__main__':
    main()
```

```python
from asmlib import *
import gen as G
from gen import MFMA, S_H, S_J, S_W, SRD_WQ, SRD_XN, SRD_KF, SRD_VF, SRD_CTX, V_OFFW, V_L16, wfrag_lane_base, spin_wait, stamp

V_ADQ = 18
S_T, S_TS = 74, 75
NEG_BIG = 0xf149f2ca

def acc2(dt, tt): return 128 + (dt * 2 + tt) * 16
XR = 128
XPF = 15
def wslot(st): return (st + 2) & 3

def p2_dma(st):
    pre = ['s_add_u32 m0, s84, %d' % (wslot(st) * 16384), 's_add_u32 s66, s85, %d' % (st * 524288)]
    ins = ['buffer_load_dwordx4 v%d, s[%d:%d], s66 offen offset:%d lds' % (V_OFFW + i, SRD_WQ, SRD_WQ + 3, i * 1024) for i in range(4)]
    return pre, ins

def xn_load(ks, tt):
    slot = ((ks % 16) * 2 + tt)
    return ('buffer_load_dwordx4 %s, v%d, s[%d:%d], s%d offen offset:%d sc1' % (ar(XR + slot * 4, 4), V_L16, SRD_XN, SRD_XN + 3, 86 + tt * 2 + ((ks // 4) & 1), (ks % 4) * 1024), ('X', ks, tt))

def xn_soff_setup(ksgrp):
    return ['s_add_u32 s%d, s%d, %d' % (86 + tt * 2 + (ksgrp & 1), 72 + tt, ksgrp * 4096) for tt in range(2)]

def wq_reads(ks):
    st, sidx = ks // 4, ks % 4
    b = 64 + (ks & 1) * 16
    out = []
    for dt in range(4):
        for u in range(2):
            out.append(('ds_read_b64_tr_b16 %s, v%d offset:%d' % (ar(b + dt * 4 + u * 2, 2), V_ADQ + dt, wslot(st) * 16384 + sidx * 4096 + u * 1024), ('W', ks, dt, u)))
    return out

def phase2_early(A):
    A('s_lshl_b32 s85, s%d, 17' % S_W)
    A('s_lshl_b32 s84, s%d, 12' % S_W)
    A('s_add_u32 s84, s84, 98304')
    A('s_sub_u32 s%d, 15, s%d' % (S_TS, S_J))
    A('s_cmp_ge_u32 s%d, 2' % S_W)
    A('s_cselect_b32 s60, s%d, s%d' % (S_J, S_TS))
    A('s_lshl_b32 s60, s60, 2')
    A('s_and_b32 s61, s%d, 1' % S_W)
    A('s_lshl_b32 s61, s61, 1')
    A('s_add_u32 s60, s60, s61')
    A('s_mul_i32 s72, s60, 40960')
    A('s_add_u32 s73, s72, 40960')

def spin_byte(A, voff, idx_sgpr, vtmp, target, mask=None):
    l0 = A.lab('Lspin'); l1 = A.lab('Lspind')
    A('s_mov_b32 s61, 0')
    A(l0 + ':')
    A('global_load_dword v%d, v%d, s[16:17] sc1' % (vtmp, voff))
    A('s_waitcnt vmcnt(0)')
    A('v_readfirstlane_b32 s60, v%d' % vtmp)
    A('s_and_b32 s63, s%d, 3' % idx_sgpr); A('s_lshl_b32 s63, s63, 3')
    A('s_lshr_b32 s60, s60, s63'); A('s_and_b32 s60, s60, 0x%x' % (mask if mask else 0xff))
    A('s_cmp_ge_u32 s60, %d' % target)
    A('s_cbranch_scc1 ' + l1)
    A('s_add_u32 s61, s61, 1')
    A('s_cmp_lt_u32 s61, 0x40000')
    A('s_sleep 2')
    A('s_cbranch_scc1 ' + l0)
    A(l1 + ':')

def flags_ok(A, vval, mask, lab_ok):
    A('v_cmp_ne_u32 vcc, 0, v%d' % vval)
    A('s_nop 1')
    A('s_and_b32 s60, vcc_lo, 0x%x' % mask)
    A('s_cmp_eq_u32 s60, 0x%x' % mask)
    A('s_cbranch_scc1 ' + lab_ok)
def spin_flags(A, vaddr, vval, mask, extra=None):
    l0 = A.lab('Lsf'); l1 = A.lab('Lsfd')
    if extra is None or not G.OPT.get('ppoll', 0):
        A('s_mov_b32 s61, 0')
        A(l0 + ':')
        A('global_load_dword v%d, v%d, s[18:19] sc1' % (vval, vaddr))
        A('s_waitcnt vmcnt(0)')
        flags_ok(A, vval, mask, l1)
        A('s_add_u32 s61, s61, 1'); A('s_cmp_lt_u32 s61, 0x40000'); A('s_sleep 2'); A('s_cbranch_scc1 ' + l0)
        A(l1 + ':')
        return
    regs = [vval] + list(extra)
    A('s_waitcnt vmcnt(0)')
    for i, r in enumerate(regs):
        A('global_load_dword v%d, v%d, s[18:19] sc1' % (r, vaddr))
        if i < 3: A('s_sleep 4')
    A('s_mov_b32 s61, 0')
    A(l0 + ':')
    for r in regs:
        A('s_waitcnt vmcnt(3)')
        flags_ok(A, r, mask, l1)
        A('global_load_dword v%d, v%d, s[18:19] sc1' % (r, vaddr))
    A('s_add_u32 s61, s61, 1'); A('s_cmp_lt_u32 s61, 0x20000'); A('s_cbranch_scc1 ' + l0)
    A(l1 + ':')

def kvf_addr(A, vdst):
    A('v_and_b32 v%d, 7, v1' % vdst); A('v_lshlrev_b32 v%d, 2, v%d' % (vdst, vdst))
    A('s_lshl_b32 s60, s%d, 7' % S_H); A('s_add_u32 s60, s60, 0x%x' % G.FLG_OFF)
    A('v_add_u32 v%d, s60, v%d' % (vdst, vdst))

def p1_hooks(A):
    h = {}
    d = []
    for st in (0, 1):
        pre, ins = p2_dma(st)
        d.append('\n'.join(pre + [ins[0]])); d += ins[1:]
    h['st1_fill'] = d
    h['st6_fill'] = ['v_mov_b32 v60, 32\nglobal_load_dwordx4 v[56:59], v60, s[16:17] sc1',
                     's_add_u32 s60, s%d, 16\ns_lshl_b32 s60, s60, 2\nv_mov_b32 v61, s60\nglobal_load_dword v62, v61, s[16:17] sc1' % S_H]
    def xn_all(A, lab_ok):
        A('v_and_b32 v56, v56, v57'); A('v_and_b32 v58, v58, v59'); A('v_and_b32 v56, v56, v58')
        A('s_nop 0')
        A('v_readfirstlane_b32 s60, v56')
        A('s_nop 3')
        A('s_cmp_eq_u32 s60, 0x10101010')
        A('s_cbranch_scc1 ' + lab_ok)
    def check(A):
        l = A.lab('Lxok'); l0 = A.lab('Lxsp')
        A('v_readfirstlane_b32 s63, v62')
        A('s_lshl_b32 s23, 8, s14')
        A('s_cmp_eq_u32 s63, s23')
        A('s_cselect_b32 s%d, 1, 0' % G.S_SAME)
        xn_all(A, l)
        A('s_mov_b32 s61, 0')
        A(l0 + ':')
        A('global_load_dwordx4 v[56:59], v60, s[16:17] sc1')
        A('s_waitcnt vmcnt(0)')
        xn_all(A, l)
        A('s_add_u32 s61, s61, 1'); A('s_cmp_lt_u32 s61, 0x40000'); A('s_sleep 2'); A('s_cbranch_scc1 ' + l0)
        A(l + ':')
    h['st6_check'] = check
    x = []
    for ks in range(XPF):
        for tt in range(2):
            t, tok = xn_load(ks, tt)
            if tt == 0 and ks % 4 == 0: t = '\n'.join(xn_soff_setup(ks // 4)) + '\n' + t
            x.append(t)
    h['st7_fill'] = x
    d = []
    for st in (2, 3):
        pre, ins = p2_dma(st)
        d.append('\n'.join(pre + [ins[0]])); d += ins[1:]
    h['st7_s3'] = d
    return h

def phase2_setup(A):
    wfrag_lane_base(A, 27, 28, 29)
    A('v_add_u32 v27, 98304, v27')
    for dt in range(4):
        A('v_xor_b32 v29, %d, v28' % dt)
        A('v_lshlrev_b32 v29, 6, v29')
        A('v_add_u32 v%d, v27, v29' % (V_ADQ + dt))

def phase2(A, OPT):
    A('LA_p2:')
    phase2_setup(A)
    vq = [('X', ks, tt) for ks in range(XPF) for tt in range(2)] + [('D', 2)] * 4 + [('D', 3)] * 4 + ([('GW',)] * 4 if G.OPT.get('fuse') and G.OPT.get('gwarm', 1) == 2 else [])
    A('s_barrier')
    q = []
    for t, tok in wq_reads(0):
        A(t); q.append(tok)
    for ks in range(40):
        if G.OPT.get('p2s'):
            A('s_memtime s[80:81]\ns_waitcnt lgkmcnt(0)\ns_mov_b32 m0, %d\nv_writelane_b32 v17, s80, m0' % ks); q = []
        st, sidx = ks // 4, ks % 4
        b = 64 + (ks & 1) * 16
        sp = []
        for dt in range(4):
            for tt in range(2):
                r = acc2(dt, tt)
                c = '0' if ks == 0 else vr(r, 16)
                sp.append(dict(t='%s %s, %s, %s, %s' % (MFMA, vr(r, 16), ar(b + dt * 4, 4), ar(XR + ((ks % 16) * 2 + tt) * 4, 4), c),
                               need=[('W', ks, dt, 0), ('W', ks, dt, 1)], needvm=[('X', ks, tt)]))
        fl = []
        if sidx == 3 and ks < 39:
            w = 'lgkmcnt(0)'
            if ('D', st + 1) in vq:
                mv = len(vq) - 1 - vq[::-1].index(('D', st + 1))
                w = 'vmcnt(%d) ' % (len(vq) - 1 - mv) + w
                vq = vq[mv + 1:]
            if ks == 35:
                w = 'vmcnt(0) lgkmcnt(0)'; vq = []
            if not G.OPT.get('pace', 1) and ks == G.OPT.get('kvsig', 23) and ('ST',) in vq:
                mv = len(vq) - 1 - vq[::-1].index(('ST',))
                w = 'vmcnt(%d) lgkmcnt(0)' % (len(vq) - 1 - mv)
                vq = vq[mv + 1:]
            A('s_waitcnt ' + w); q = []
            if G.OPT.get('pace', 1) and ks == 19:
                lx = A.lab('Lpw')
                A('s_cmp_lt_u32 s%d, 2' % S_J); A('s_cbranch_scc0 ' + lx)
                A('s_waitcnt vmcnt(6)')
                A(lx + ':')
            if ks == 35:
                l = A.lab('Lkv'); l2 = A.lab('Lkv')
                A('s_cmp_lg_u32 s%d, 0' % S_W); A('s_cbranch_scc1 ' + l)
                flags_ok(A, 30, 3, l2)
                spin_flags(A, 31, 30, 3)
                A(l2 + ':')
                A('s_cmp_eq_u32 s%d, 1' % G.S_SAME); A('s_cbranch_scc1 ' + l)
                A('buffer_inv sc1'); A('s_waitcnt vmcnt(0)')
                A(l + ':')
            A('s_barrier')
            def rel(A):
                lr = A.lab('Lrel')
                A('s_cmp_eq_u32 s%d, 1' % G.S_SAME); A('s_cbranch_scc1 ' + lr)
                A('buffer_wbl2 sc1'); A('s_waitcnt vmcnt(0)')
                A(lr + ':')
            def kvsignal(cond_fast):
                lw = A.lab('Lsg')
                if cond_fast is not None:
                    A('s_cmp_lt_u32 s%d, 2' % S_J); A(('s_cbranch_scc0 ' if cond_fast else 's_cbranch_scc1 ') + lw)
                A('s_cmp_lg_u32 s%d, 0' % S_W); A('s_cbranch_scc1 ' + lw)
                rel(A)
                G.flag_store(A, G.KVF_ADDR, '1', 28)
                A(lw + ':')
            if G.OPT.get('pace', 1):
                if ks == 19: kvsignal(True)
                if ks == 35: kvsignal(False)
            elif ks == G.OPT.get('kvsig', 23):
                assert ('ST',) not in vq
                kvsignal(None)
            if st + 4 < 10:
                pre, ins = p2_dma(st + 4)
                for i, t in enumerate(ins):
                    fl.append(dict(t=('\n'.join(pre) + '\n' + t) if i == 0 else t, pos=0.5 + 1.9 * i, cost=18, vm=('D', st + 4)))
        PACE = G.OPT.get('pace', 1)
        if PACE and ks < 32:
            ln = A.lab('Lpn'); lf = A.lab('Lpf')
            if ks < 16:
                t = 's_cmp_lt_u32 s%d, 2\ns_cbranch_scc1 %s\n%s\ns_branch %s\n%s:\n%s\n%s\n%s:' % (S_J, lf, G.kv_store(ks), ln, lf, G.kv_store(2 * ks), G.kv_store(2 * ks + 1), ln)
            else:
                t = 's_cmp_lt_u32 s%d, 2\ns_cbranch_scc1 %s\n%s\n%s:' % (S_J, ln, G.kv_store(ks), ln)
            fl.append(dict(t=t, pos=6.6, cost=20))
        NSK = G.OPT.get('nsk', 20)
        lo, hi = (32 * ks + NSK - 1) // NSK, (32 * (ks + 1) + NSK - 1) // NSK
        if not PACE and ks < NSK and not G.OPT.get('nostore'):
            for n_, i in enumerate(range(lo, min(hi, 32))):
                fl.append(dict(t=G.kv_store(i), pos=4.2 + 2.2 * n_, cost=18, vm=('ST',)))
        if ks == 32:
            kvf_addr(A, 31)
            fl.append(dict(t='global_load_dword v30, v31, s[18:19] sc1', pos=6.5, cost=18, vm=('FL',)))
        if ks + 1 < 40:
            for i, (t, tok) in enumerate(wq_reads(ks + 1)):
                fl.append(dict(t=t, pos=0.1 + i * 0.8, cost=6, ds=tok))
        if ks + XPF < 40:
            k2 = ks + XPF
            pre = xn_soff_setup(k2 // 4) if k2 % 4 == 0 else []
            for tt in range(2):
                t, tok = xn_load(k2, tt)
                fl.append(dict(t='\n'.join(pre + [t]) if tt == 0 else t, pos=2.5 + 3 * tt, cost=16, vm=tok))
        if ks >= 36:
            if ks == 36:
                A('s_lshl_b32 s62, s%d, 13' % S_W)
                A('s_add_u32 s64, s62, 32768')
                KV = dma_tile('k', 0, 62, 62) + dma_tile('v', 0, 62, 62) + dma_tile('k', 1, 62, 64)
            for i, t in enumerate(KV[(ks - 36) * 6:(ks - 36) * 6 + 6]):
                fl.append(dict(t=t, pos=0.3 + i * 1.25, cost=18, vm=('KV',)))
        q, vq = interleave(A, sp, fl, q, vm_state=vq)
    if G.OPT.get('p2s'):
        A('s_lshl_b32 s60, s2, 10\ns_lshl_b32 s61, s%d, 8\ns_add_u32 s60, s60, s61\ns_add_u32 s60, s60, 0x%x' % (S_W, G.TS_OFF + (2 << 20)))
        A('v_lshlrev_b32 v16, 2, v1\nv_add_u32 v16, s60, v16\nglobal_store_dword v16, v17, s[18:19]')
    A('s_nop 15')
    A('s_barrier')
    A('s_lshl_b32 s60, s%d, 14' % S_W)
    A('s_add_u32 s60, s60, 98304')
    A('v_add_u32 v27, s60, v%d' % V_L16)
    k = 0
    for tt in range(2):
        for dt in range(4):
            for half in range(2):
                base = acc2(dt, tt) + 8 * half
                tb = 32 + (k % 4) * 4
                for j in range(4):
                    A('v_cvt_pk_bf16_f32 v%d, v%d, v%d' % (tb + j, base + 2 * j, base + 2 * j + 1))
                A('ds_write_b128 v27, %s offset:%d' % (vr(tb, 4), (tt * 8 + 2 * dt + half) * 1024))
                k += 1

S_KOFF, S_VOFF, S_KM0, S_VM0, S_EV, S_RET = 67, 68, 69, 70, 71, 78
S_MODE, S_BADW = 83, 82
DROP = 0x30000
MSK = 24

def dma_grp(kind, slot, g, sm0, soff):
    base = (0 if kind == 'k' else 65536) + slot * 32768 + g * 4096
    sd = SRD_KF if kind == 'k' else SRD_VF
    pre = ['s_add_u32 m0, s%d, %d' % (sm0, base), 's_add_u32 s66, s%d, %d' % (soff, g * 4096)]
    ins = ['buffer_load_dwordx4 v%d, s[%d:%d], s66 offen offset:%d sc1 lds' % (V_L16, sd, sd + 3, i * 1024) for i in range(4)]
    return ['\n'.join(pre + [ins[0]])] + ins[1:]
def dma_tile(kind, slot, sm0, soff):
    return dma_grp(kind, slot, 0, sm0, soff) + dma_grp(kind, slot, 1, sm0, soff)

def Sreg(par, kt, qt): return 64 + par * 64 + (kt * 2 + qt) * 16
def Preg(qt, g): return 32 + (qt * 4 + g) * 4
def Oreg(qt, dt): return (qt * 4 + dt) * 16
def Qreg(qt, s_): return 128 + (qt * 8 + s_) * 4
def ring(f): return 192 + (f % 16) * 4
V_K, V_V = 2, 3
V_L = 4
DPF = 6

def k_read(f, slot):
    kt, s_ = f // 8, f % 8
    return 'ds_read_b128 %s, v%d offset:%d' % (ar(ring(f), 4), V_K, slot * 32768 + kt * 8192 + s_ * 1024)
def v_read(f, slot):
    j = f - 16
    g, dt = j // 4, j % 4
    return 'ds_read_b128 %s, v%d offset:%d' % (ar(ring(f), 4), V_V, slot * 32768 + g * 4096 + dt * 1024)

def fneed(f):
    return [('F', f), ('F', f + 1)] if f % 2 == 0 else [('F', f)]
def qk_spine(par_dst):
    sp = []
    for kt in range(2):
        for s_ in range(8):
            f = kt * 8 + s_
            for qt in range(2):
                r = Sreg(par_dst, kt, qt)
                c = '0' if s_ == 0 else vr(r, 16)
                sp.append(dict(t='%s %s, %s, %s, %s' % (MFMA, vr(r, 16), ar(ring(f), 4), ar(Qreg(qt, s_), 4), c), need=fneed(f)))
    return sp
def pv_spine():
    sp = []
    for g in range(4):
        for dt in range(4):
            f = 16 + g * 4 + dt
            for qt in range(2):
                r = Oreg(qt, dt)
                sp.append(dict(t='%s %s, %s, %s, %s' % (MFMA, ar(r, 16), ar(ring(f), 4), vr(Preg(qt, g), 4), ar(r, 16)), need=fneed(f)))
    return sp

def softmax_ops(par):
    lag = G.OPT.get('lag', 1)
    pairs = []
    for g in range(4):
        kt, half = g // 2, g % 2
        for qt in range(2):
            b = Sreg(par, kt, qt) + 8 * half
            for j in range(4):
                pairs.append((g, qt, j, b + 2 * j, b + 2 * j + 1))
    out = []
    def cons(p):
        g, qt, j, x0, x1 = p
        out.append((g, 'v_add_f32 v%d, v%d, v%d' % (V_L + qt * 2, V_L + qt * 2, x0), 4))
        out.append((g, 'v_add_f32 v%d, v%d, v%d' % (V_L + qt * 2 + 1, V_L + qt * 2 + 1, x1), 4))
        out.append((g, 'v_cvt_pk_bf16_f32 v%d, v%d, v%d' % (Preg(qt, g) + j, x0, x1), G.OPT.get('ccvt', 4)))
    for i, p in enumerate(pairs):
        g, qt, j, x0, x1 = p
        out.append((g, 'v_exp_f32 v%d, v%d' % (x0, x0), 8))
        out.append((g, 'v_exp_f32 v%d, v%d' % (x1, x1), 8))
        if i - lag >= 0: cons(pairs[i - lag])
    for p in pairs[len(pairs) - lag:]:
        if lag == 1: out.append((p[0], 's_nop 0', 1))
        cons(p)
    return out

REPORT = []
def _c(): return G.OPT.get('cds', 5), G.OPT.get('cvm', 18)
def body(A, par, q, tail=False):
    if G.OPT.get('its'):
        A('s_memtime s[80:81]')
        A('s_waitcnt lgkmcnt(0)')
        A('s_lshl_b32 s60, s%d, 1' % S_T)
        A('s_mov_b32 m0, s60')
        A('v_writelane_b32 v25, s80, m0')
    CDS, CVM = _c()
    A('s_waitcnt vmcnt(8)')
    A('s_barrier')
    fl = []
    if not tail:
        sp = qk_spine(par ^ 1) + pv_spine()
        PV0 = 32
        dv = dma_tile('v', par ^ 1, S_VM0, S_VOFF)
        for i, t in enumerate(dv):
            fl.append(dict(t=t, pos=1 + i * 3.6, cost=CVM, stream='dma', due=30))
        fl.append(dict(t='s_add_u32 s%d, s%d, 32768' % (S_VOFF, S_VOFF), pos=29, cost=1, stream='dma', due=30))
        fl.append(dict(t='s_waitcnt vmcnt(8)\ns_barrier', pos=31, ready=31, due=31, cost=6, stream='dma'))
        dk = dma_tile('k', par ^ 1, S_KM0, S_KOFF)
        for i, t in enumerate(dk):
            fl.append(dict(t=t, pos=G.OPT.get('kp0', 380) / 10.0 + i * G.OPT.get('kps', 33) / 10.0, ready=32, cost=CVM, stream='dma', due=62))
        fl.append(dict(t='s_add_u32 s%d, s%d, 32768' % (S_KOFF, S_KOFF), pos=62, cost=1, stream='dma', due=63))
        for f in range(DPF, 32 + DPF):
            if f < 16: t = k_read(f, par ^ 1)
            elif f < 32: t = v_read(f, par)
            else: t = k_read(f - 32, par)
            use = 2 * f
            rdy = max(2 * (f - 16) + 2, -1)
            if f >= 32: rdy = max(rdy, 32)
            fl.append(dict(t=t, pos=2 * (f - DPF) + 0.3, ready=rdy, due=min(use - 4, 63), cost=CDS, stream='lds', ds=('F', f % 32)))
        span, start = G.OPT.get('span', 510) / 10.0, 0.0
    else:
        sp = pv_spine()
        PV0 = 0
        for f in range(16, 32):
            t = v_read(f, par)
            use = 2 * (f - 16)
            fl.append(dict(t=t, pos=use - 2 * DPF, ready=-1, due=max(use - 4, -1), cost=CDS, stream='lds', ds=('F', f)))
    ops = softmax_ops(par)
    tot = sum(c for _, _, c in ops)
    acc = 0.0
    if not tail:
        for g, t, c in ops:
            fl.append(dict(t=t, pos=start + span * acc / tot, cost=c, stream='sm', due=PV0 + 8 * g - 2))
            acc += c
        q = pack(A, sp, fl, q, report=REPORT, budget=G.OPT.get('bud', 24))
    else:
        for f in [x for x in fl if x['due'] < 0]:
            A(f['t']); q.append(f['ds'])
        fl = [x for x in fl if x['due'] >= 0]
        last0 = max(i for i, (g, t, c) in enumerate(ops) if g == 0)
        for i, (g, t, c) in enumerate(ops):
            if i <= last0: A(t)
            else:
                fl.append(dict(t=t, pos=(acc / tot) * 22.0 - 6, cost=c, stream='sm', due=max(8 * g - 2, 0)))
            acc += c
        A('s_nop 0')
        q = pack(A, sp, fl, q, budget=40, report=REPORT)
    return q

def mask_setup(A):
    A('v_and_b32 v8, 31, v1')
    A('v_lshrrev_b32 v9, 5, v1')
    A('v_lshlrev_b32 v9, 2, v9')
    A('v_sub_u32 v8, v8, v9')
    for r in range(16):
        A('v_cmp_le_i32 s[%d:%d], %d, v8' % (mskreg(r), mskreg(r) + 1, 8 * (r >> 2) + (r & 3)))
def mskreg(r):
    l = [24, 26, 28, 30, 32, 34, 36, 38, 40, 42, 56, 58, 4, 6, 8, 10]
    return l[r]

def mask_block(A, par):
    l1 = A.lab('Lm1'); l2 = A.lab('Lm2'); le = A.lab('Lme')
    A('s_cmp_eq_u32 s%d, 1' % S_W); A('s_cbranch_scc1 ' + le)
    A('s_cmp_eq_u32 s%d, 2' % S_W); A('s_cbranch_scc1 ' + l2)
    for d in range(2):
        for r in range(16):
            x = Sreg(par, d, d) + r
            A('v_cndmask_b32 v%d, v10, v%d, s[%d:%d]' % (x, x, mskreg(r), mskreg(r) + 1))
    for r in range(16): A('v_mov_b32 v%d, v10' % (Sreg(par, 1, 0) + r))
    A('s_branch ' + le)
    A(l2 + ':')
    for r in range(64): A('v_mov_b32 v%d, v10' % (Sreg(par, 0, 0) + r))
    A(le + ':')

def finalize(A, grpB):
    keep = (2, 3) if grpB else (0, 1)
    send = (0, 1) if grpB else (2, 3)
    A('v_mov_b32 v20, 0\nv_mov_b32 v21, 0\nv_mov_b32 v22, 0\nv_mov_b32 v23, 0')
    A('ds_write_b64 v13, v[16:17]')
    i = 0
    for qt in range(2):
        for dl in range(2):
            for rq in range(4):
                A('ds_write_b128 v11, %s offset:%d' % (ar(Oreg(qt, send[dl]) + rq * 4, 4), i * 1024))
                for e in range(4):
                    A('v_accvgpr_read_b32 v%d, a%d' % (192 + i * 4 + e, Oreg(qt, keep[dl]) + rq * 4 + e))
                i += 1
            A('%s %s, v[20:23], v[20:23], 0' % (MFMA, ar(Oreg(qt, keep[dl]), 16)))
    A('s_lshl_b32 s60, s79, 2')
    A('s_and_b32 s61, s%d, 1' % S_W)
    A('s_lshl_b32 s61, s61, 1')
    A('s_add_u32 s60, s60, s61')
    A('s_lshl_b32 s60, s60, 18')
    A('s_lshl_b32 s61, s%d, 13' % S_H)
    A('s_add_u32 s60, s60, s61')
    A('s_add_u32 s60, s60, %d' % (keep[0] * 2048))
    A('s_add_u32 s61, s60, 0x40000')
    A('s_waitcnt lgkmcnt(0)')
    for qt in range(2):
        for dl in range(2):
            A('%s %s, v[20:23], v[20:23], 0' % (MFMA, ar(Oreg(qt, send[dl]), 16)))
    A('s_barrier')
    A('ds_read_b64 v[18:19], v14')
    def rd(idx):
        for rq in range(4):
            A('ds_read_b128 %s, v12 offset:%d' % (vr(32 + (idx % 2) * 16 + rq * 4, 4), (idx * 4 + rq) * 1024))
    rd(0); rd(1)
    A('s_waitcnt lgkmcnt(8)')
    A('v_add_f32 v16, v16, v18')
    A('v_add_f32 v17, v17, v19')
    A('v_mov_b32 v18, 0x21800000')
    A('v_mov_b32 v19, 0x5d800000')
    for qt in range(2):
        A('v_cmp_nge_f32 vcc, v%d, v18' % (16 + qt))
        A('s_or_b64 s[76:77], s[76:77], vcc')
        A('v_cmp_nle_f32 vcc, v%d, v19' % (16 + qt))
        A('s_or_b64 s[76:77], s[76:77], vcc')
    A('v_rcp_f32 v14, v16')
    A('v_rcp_f32 v18, v17')
    A('s_nop 0')
    A('v_mov_b32 v15, v14')
    A('v_mov_b32 v19, v18')
    sc = ' sc1' if G.OPT.get('fuse') else ''
    k = 0
    for idx in range(4):
        qt, dl = idx // 2, idx % 2
        A('s_waitcnt lgkmcnt(%d)' % (4 if idx < 3 else 0))
        b = 32 + (idx % 2) * 16
        o = 192 + idx * 16
        rp = 14 if qt == 0 else 18
        for j in range(8):
            A('v_pk_add_f32 %s, %s, %s' % (vr(o + 2 * j, 2), vr(o + 2 * j, 2), vr(b + 2 * j, 2)))
        if idx + 2 < 4: rd(idx + 2)
        for j in range(8):
            A('v_pk_mul_f32 %s, %s, %s' % (vr(o + 2 * j, 2), vr(o + 2 * j, 2), vr(rp, 2)))
        for half in range(2):
            pk = 28 if k % 2 == 0 else 4
            for j in range(4):
                A('v_cvt_pk_bf16_f32 v%d, v%d, v%d' % (pk + j, o + 8 * half + 2 * j, o + 8 * half + 2 * j + 1))
            A('buffer_store_dwordx4 %s, v%d, s[%d:%d], s%d offen offset:%d%s' % (vr(pk, 4), V_L16, SRD_CTX, SRD_CTX + 3, 60 + qt, (2 * dl + half) * 1024, sc))
            k += 1
    A('s_nop 1')
    for i in range(4):
        A('v_mov_b32 v%d, 0' % (V_L + i))

def zero_O(A):
    A('v_mov_b32 v20, 0\nv_mov_b32 v21, 0\nv_mov_b32 v22, 0\nv_mov_b32 v23, 0')
    A('s_nop 1')
    for i in range(8):
        A('%s %s, v[20:23], v[20:23], 0' % (MFMA, ar(i * 16, 16)))
    for i in range(4):
        A('v_mov_b32 v%d, 0' % (V_L + i))

def event_handler(A, par):
    tag = 'e' if par == 0 else 'o'
    A('LA_ev_%s:' % tag)
    if par == 0:
        l = A.lab('Lev')
        A('s_cmp_lg_u32 s%d, 0' % S_T); A('s_cbranch_scc1 ' + l)
        spin_flags(A, 24, 23, 0xff)
        A('s_cmp_eq_u32 s%d, 1' % G.S_SAME); A('s_cbranch_scc1 ' + l)
        A('buffer_inv sc1'); A('s_waitcnt vmcnt(0)')
        A(l + ':')
    if G.OPT.get('fuse'):
        import gen_fuse
        l = A.lab('Lev')
        A('s_add_u32 s60, s%d, 1' % S_TS); A('s_cmp_lg_u32 s60, s%d' % S_T); A('s_cbranch_scc1 ' + l)
        A('s_bitcmp1_b32 s%d, 0' % S_BADW); A('s_cbranch_scc1 ' + l)
        gen_fuse.signal_ctx(A, S_TS)
        A(l + ':')
    l = A.lab('Lev')
    A('s_add_u32 s60, s%d, 3' % S_T); A('s_cmp_lg_u32 s60, s%d' % S_TS); A('s_cbranch_scc1 ' + l)
    A('s_mov_b32 s%d, s62' % S_KOFF)
    A(l + ':')
    l = A.lab('Lev')
    A('s_cmp_lg_u32 s%d, 13' % S_T); A('s_cbranch_scc1 ' + l)
    A('s_mov_b32 s%d, 0x%x' % (S_KM0, DROP))
    A('s_mov_b32 s%d, 0x200000' % S_KOFF)
    A(l + ':')
    l = A.lab('Lev')
    A('s_cmp_lg_u32 s%d, 15' % S_T); A('s_cbranch_scc1 ' + l)
    A('s_mov_b32 s%d, 0x%x' % (S_VM0, DROP))
    A('s_mov_b32 s%d, 0x200000' % S_VOFF)
    if G.OPT.get('fuse'): (gen_fuse.wo_warm2 if G.OPT.get('op2', 0) else gen_fuse.wo_warm)(A)
    mask_block(A, par ^ 1)
    A(l + ':')
    l = A.lab('Lev')
    A('s_add_u32 s60, s%d, 1' % S_T); A('s_cmp_lg_u32 s60, s%d' % S_TS); A('s_cbranch_scc1 ' + l)
    mask_block(A, par ^ 1)
    for i in range(64):
        A('v_accvgpr_write_b32 a%d, v%d' % (128 + i, 192 + i))
    A('s_mov_b32 s%d, s62' % S_VOFF)
    A('s_mov_b32 s%d, 0x%x' % (S_KM0, DROP))
    A('s_mov_b32 s81, s%d' % S_KOFF)
    A('s_mov_b32 s%d, 0x200000' % S_KOFF)
    A(l + ':')
    A('s_cmp_lg_u32 s%d, s%d' % (S_T, S_TS)); A('s_cbranch_scc1 LA_cont_%s' % tag)
    A('s_mov_b32 s%d, %d' % (S_RET, par))
    A('s_branch LA_fin')

def finalize_block(A):
    A('LA_fin:')
    A('s_mov_b64 s[76:77], 0')
    A('s_cmp_eq_u32 s%d, s%d' % (S_T, S_TS))
    A('s_cselect_b32 s79, s%d, s%d' % (S_TS, S_J))
    A('s_nop 7')
    for qt in range(2):
        A('v_add_f32 v%d, v%d, v%d' % (16 + qt, V_L + 2 * qt, V_L + 2 * qt + 1))
        A('v_mov_b32 v%d, v%d' % (18 + qt, 16 + qt))
    A('s_and_b32 s63, s%d, 1' % S_T)
    A('s_xor_b32 s60, s63, 1')
    A('s_lshl_b32 s60, s60, 15')
    for qt in range(2):
        A('v_permlane32_swap_b32 v%d, v%d' % (16 + qt, 18 + qt))
    A('s_and_b32 s61, s%d, 1' % S_W)
    A('s_lshl_b32 s61, s61, 14')
    A('s_add_u32 s64, s60, s61')
    A('s_add_u32 s65, s61, 0x20000')
    for qt in range(2):
        A('v_add_f32 v%d, v%d, v%d' % (16 + qt, 16 + qt, 18 + qt))
    A('s_cmp_ge_u32 s%d, 2' % S_W)
    A('s_cselect_b32 s60, s64, s65')
    A('s_cselect_b32 s61, s65, s64')
    A('v_add_u32 v11, s60, v%d' % V_L16)
    A('v_add_u32 v12, s61, v%d' % V_L16)
    A('s_lshl_b32 s60, s63, 15')
    A('s_add_u32 s60, s60, 65536')
    A('v_lshlrev_b32 v13, 3, v1')
    A('v_add_u32 v13, s60, v13')
    A('s_lshl_b32 s61, s%d, 9' % S_W)
    A('s_xor_b32 s60, s61, 1024')
    A('v_add_u32 v14, s60, v13')
    A('v_add_u32 v13, s61, v13')
    A('s_waitcnt lgkmcnt(0)')
    A('s_barrier')
    A('s_cmp_ge_u32 s%d, 2' % S_W)
    A('s_cbranch_scc1 LA_finB')
    finalize(A, False)
    A('s_branch LA_finJ')
    A('LA_finB:')
    finalize(A, True)
    A('LA_finJ:')
    A('s_cmp_lg_u64 s[76:77], 0')
    A('s_cselect_b32 s60, 1, 0')
    A('v_mov_b32 v23, s60')
    A('s_lshl_b32 s60, s63, 15'); A('s_add_u32 s60, s60, %d' % (65536 + 4096))
    A('s_lshl_b32 s61, s%d, 2' % S_W); A('s_add_u32 s61, s61, s60')
    A('v_mov_b32 v24, s61'); A('v_mov_b32 v22, s60')
    A('ds_write_b32 v24, v23')
    A('s_waitcnt lgkmcnt(0)')
    A('s_barrier')
    A('ds_read_b128 v[20:23], v22')
    def badmerge():
        A('s_cmp_eq_u32 s%d, s%d' % (S_T, S_TS))
        A('s_cselect_b32 s61, 1, 2')
        A('s_waitcnt lgkmcnt(0)')
        A('v_or_b32 v20, v20, v21'); A('v_or_b32 v22, v22, v23'); A('v_or_b32 v20, v20, v22')
        A('s_nop 0')
        A('v_readfirstlane_b32 s60, v20')
        A('s_nop 3')
        A('s_mul_i32 s60, s60, s61')
        A('s_or_b32 s%d, s%d, s60' % (S_BADW, S_BADW))
    lo = A.lab('Lfo')
    A('s_cmp_lt_u32 s%d, 2' % S_RET)
    A('s_cbranch_scc1 ' + lo)
    badmerge()
    A('s_cmp_eq_u32 s%d, 2' % S_RET)
    A('s_cbranch_scc1 LA_att_done')
    A('s_cmp_eq_u32 s%d, 3' % S_RET)
    A('s_cbranch_scc1 LA_safe_b2')
    A('s_branch LA_safe_done')
    A(lo + ':')
    ls = A.lab('Lnok')
    A('s_cmp_gt_u32 s%d, 13' % S_T)
    A('s_cbranch_scc1 ' + ls)
    A('s_mov_b32 s64, s81')
    A('s_add_u32 s%d, s81, 32768' % S_KOFF)
    A('s_xor_b32 s65, s63, 1')
    A('s_lshl_b32 s65, s65, 15')
    A('s_add_u32 s65, s65, s62')
    A('\n'.join(dma_tile('k', 0, 65, 64)))
    A('s_cmp_ge_u32 s%d, 13' % S_T)
    A('s_cselect_b32 s%d, s%d, s62' % (S_KM0, S_KM0))
    A('s_cselect_b32 s%d, 0x200000, s%d' % (S_KOFF, S_KOFF))
    A(ls + ':')
    badmerge()
    A('s_cmp_eq_u32 s%d, 0' % S_RET)
    A('s_cbranch_scc1 LA_cont_e')
    A('s_branch LA_cont_o')


def safe_block(A, tag, first):
    lp = 'LA_sf_loop_' + tag
    zero_O(A)
    for qt in range(2):
        A('v_mov_b32 v%d, 0xff7fffff' % (26 + qt + 2))
    A('s_mov_b32 s65, 0')
    A(lp + ':')
    A('s_barrier')
    A('s_lshl_b32 s60, s65, 15'); A('s_add_u32 s81, s60, s62')
    A('\n'.join(dma_tile('k', 0, 62, 81)))
    A('\n'.join(dma_tile('v', 0, 62, 81)))
    A('s_waitcnt vmcnt(0)')
    A('s_barrier')
    sp = qk_spine(0)
    fl = [dict(t=k_read(f, 0), pos=2 * (f - DPF) + 0.5, cost=8, ds=('F', f)) for f in range(16)]
    interleave(A, sp, fl, [])
    A('s_nop 15')
    lm = A.lab('Lsfm')
    A('s_cmp_lg_u32 s65, s64'); A('s_cbranch_scc1 ' + lm)
    mask_block(A, 0)
    A(lm + ':')
    for qt in range(2):
        regs = [Sreg(0, kt, qt) + r for kt in range(2) for r in range(16)]
        A('v_max_f32 v12, v%d, v%d' % (regs[0], regs[1]))
        for i in range(2, 32, 2):
            A('v_max3_f32 v12, v12, v%d, v%d' % (regs[i], regs[i + 1]))
        A('v_mov_b32 v13, v12'); A('s_nop 1')
        A('v_permlane32_swap_b32 v12, v13'); A('s_nop 1')
        A('v_max_f32 v12, v12, v13')
        A('v_max_f32 v12, v12, v%d' % (28 + qt))
        A('v_sub_f32 v13, v%d, v12' % (28 + qt))
        A('v_exp_f32 v13, v13')
        A('v_mov_b32 v%d, v12' % (28 + qt))
        A('v_mul_f32 v%d, v%d, v13' % (V_L + 2 * qt, V_L + 2 * qt))
        A('v_mul_f32 v%d, v%d, v13' % (V_L + 2 * qt + 1, V_L + 2 * qt + 1))
        for dt in range(4):
            for r in range(16):
                a_ = Oreg(qt, dt) + r
                A('v_accvgpr_read_b32 v14, a%d' % a_); A('v_mul_f32 v14, v14, v13'); A('v_accvgpr_write_b32 a%d, v14' % a_)
        for x in regs:
            A('v_sub_f32 v%d, v%d, v12' % (x, x))
    for g, t, c in softmax_ops(0): A(t)
    sp = pv_spine()
    fl = [dict(t=v_read(f, 0), pos=2 * (f - 16 - DPF) + 0.5, cost=8, ds=('F', f)) for f in range(16, 32)]
    A('s_nop 1')
    interleave(A, sp, fl, [])
    A('s_add_u32 s65, s65, 1')
    A('s_cmp_le_u32 s65, s64')
    A('s_cbranch_scc1 ' + lp)
    A('s_nop 15')
    A('s_barrier')
    A('v_lshlrev_b32 v12, 3, v1'); A('v_add_u32 v12, 0x20000, v12')
    A('s_lshl_b32 s60, s%d, 9' % S_W); A('v_add_u32 v13, s60, v12')
    A('s_xor_b32 s60, s60, 1024'); A('v_add_u32 v12, s60, v12')
    A('ds_write_b64 v13, v[28:29]')
    A('s_waitcnt lgkmcnt(0)'); A('s_barrier')
    A('ds_read_b64 v[14:15], v12')
    A('s_waitcnt lgkmcnt(0)'); A('s_barrier')
    for qt in range(2):
        A('v_max_f32 v12, v%d, v%d' % (28 + qt, 14 + qt))
        A('v_sub_f32 v13, v%d, v12' % (28 + qt))
        A('v_exp_f32 v13, v13'); A('s_nop 0')
        A('v_mul_f32 v%d, v%d, v13' % (V_L + 2 * qt, V_L + 2 * qt))
        A('v_mul_f32 v%d, v%d, v13' % (V_L + 2 * qt + 1, V_L + 2 * qt + 1))
        for dt in range(4):
            for r in range(16):
                a_ = Oreg(qt, dt) + r
                A('v_accvgpr_read_b32 v11, a%d' % a_); A('v_mul_f32 v11, v11, v13'); A('v_accvgpr_write_b32 a%d, v11' % a_)
    A('s_nop 3')

def safe_path(A):
    A('LA_redo:')
    A('s_mov_b32 s%d, 1' % S_MODE)
    A('s_waitcnt vmcnt(0) lgkmcnt(0)')
    A('s_barrier')
    A('s_load_dwordx2 s[8:9], s[0:1], 16')
    A('s_waitcnt lgkmcnt(0)')
    A('s_lshl_b32 s60, s%d, 8' % S_H)
    G.srd(A, SRD_WQ, 8, 9, 's60', 0)
    A('s_sub_u32 s%d, 0x500000, s60' % (SRD_WQ + 2))
    G.srd(A, SRD_XN, 18, 19, None, 2048 * 640 * 2)
    G.srd(A, 4, 18, 19, None, 0)
    A('s_mov_b32 s67, 0')
    G.voffw_setup(A)
    phase2_early(A)
    for st in (0, 1):
        pre, ins = p2_dma(st); A('\n'.join(pre + ins))
    A('s_waitcnt vmcnt(0)')
    for ks in range(XPF):
        for tt in range(2):
            t, tok = xn_load(ks, tt)
            if tt == 0 and ks % 4 == 0: A('\n'.join(xn_soff_setup(ks // 4)))
            A(t)
    for st in (2, 3):
        pre, ins = p2_dma(st); A('\n'.join(pre + ins))
    if G.OPT.get('fuse') and G.OPT.get('gwarm', 1) == 2:
        A('v_mov_b32 v27, 0')
        for i in range(4): A('global_load_dword v16, v27, s[18:19]')
    A('s_branch LA_p2')
    A('LA_safe:')
    A('s_lshl_b32 s62, s%d, 13' % S_W)
    A('s_waitcnt vmcnt(0) lgkmcnt(0)')
    l = A.lab('Lsf1')
    A('s_bitcmp1_b32 s%d, 0' % S_BADW); A('s_cbranch_scc0 LA_safe_b2')
    A('s_mov_b32 s64, s%d' % S_TS)
    safe_block(A, 'a', True)
    for i in range(64):
        A('v_accvgpr_write_b32 a%d, v%d' % (128 + i, 192 + i))
    A('s_or_b32 s%d, s%d, 4' % (S_BADW, S_BADW))
    A('s_mov_b32 s%d, s%d' % (S_T, S_TS))
    A('s_mov_b32 s%d, 3' % S_RET)
    A('s_branch LA_fin')
    A('LA_safe_b2:')
    A('s_bitcmp1_b32 s%d, 1' % S_BADW); A('s_cbranch_scc0 LA_safe_done')
    lq = A.lab('Lsfq')
    A('s_bitcmp1_b32 s%d, 2' % S_BADW); A('s_cbranch_scc1 ' + lq)
    for i in range(64):
        A('v_accvgpr_write_b32 a%d, v%d' % (128 + i, 192 + i))
    A(lq + ':')
    A('s_mov_b32 s64, s%d' % S_J)
    safe_block(A, 'b', False)
    A('s_mov_b32 s%d, 16' % S_T)
    A('s_mov_b32 s%d, 4' % S_RET)
    A('s_branch LA_fin')

def phase3(A, OPT):
    A('s_waitcnt lgkmcnt(0)')
    A('s_barrier')
    A('s_lshr_b32 s60, s%d, 1' % S_W)
    A('s_lshl_b32 s60, s60, 14')
    A('v_add_u32 v%d, s60, v%d' % (V_K, V_L16))
    A('v_add_u32 v%d, 0x10000, v%d' % (V_V, V_K))
    A('s_mov_b32 s%d, 0' % S_T)
    A('s_and_b32 s60, s%d, 1' % S_W)
    A('s_lshl_b32 s60, s60, 14')
    A('s_add_u32 s60, s60, 98304')
    A('v_add_u32 v27, s60, v%d' % V_L16)
    for i in range(16):
        A('ds_read_b128 %s, v27 offset:%d' % (ar(128 + i * 4, 4), i * 1024))
        if i == 14: A('s_waitcnt lgkmcnt(8)')
    A('s_waitcnt lgkmcnt(8)')
    for i in range(16):
        A('ds_read_b128 %s, v27 offset:%d' % (vr(192 + i * 4, 4), 32768 + i * 1024))
        if i == 6: A('s_waitcnt lgkmcnt(4)')
        if i == 14: A('s_waitcnt lgkmcnt(4)')
    mask_setup(A)
    A('v_mov_b32 v10, 0x%x' % NEG_BIG)
    A('s_cmp_lg_u32 s%d, 0' % S_MODE)
    A('s_cbranch_scc1 LA_safe')
    A('s_add_u32 s%d, s62, %d' % (S_VOFF, 32768))
    A('s_add_u32 s%d, s62, %d' % (S_KOFF, 3 * 32768))
    A('s_mov_b32 s%d, s62' % S_KM0); A('s_mov_b32 s%d, s62' % S_VM0)
    A('s_sub_u32 s60, s%d, 3' % S_TS)
    A('s_lshl_b32 s%d, %d, s60' % (S_EV, 29 if G.OPT.get('fuse') else 13))
    A('s_or_b32 s%d, s%d, 0x%x' % (S_EV, S_EV, (1 << 13) | (1 << 15) | 1))
    zero_O(A)
    A('s_waitcnt vmcnt(0) lgkmcnt(0)')
    A('s_barrier')
    stamp(A)
    kvf_addr(A, 24)
    A('global_load_dword v23, v24, s[18:19] sc1')
    sp = qk_spine(0)
    fl = []
    for f in range(16):
        fl.append(dict(t=k_read(f, 0), pos=2 * (f - DPF) + 0.5, cost=8, ds=('F', f)))
    q = interleave(A, sp, fl, [])
    lk = A.lab('Lkvf')
    A('s_waitcnt vmcnt(0)')
    A('v_cmp_ne_u32 vcc, 0, v23'); A('s_nop 1')
    A('s_and_b32 s60, vcc_lo, 0xff')
    A('s_cmp_lg_u32 s60, 0xff'); A('s_cbranch_scc1 ' + lk)
    A('s_cmp_lg_u32 s%d, 1' % G.S_SAME); A('s_cbranch_scc1 ' + lk)
    A('s_and_b32 s%d, s%d, 0xfffffffe' % (S_EV, S_EV))
    A(lk + ':')
    A('s_barrier')
    A('s_add_u32 s64, s62, 65536')
    A('\n'.join(dma_tile('k', 0, 62, 64)))
    q = []
    for f in range(DPF):
        A(k_read(f, 1)); q.append(('F', f))
    q0 = list(q)
    A('.p2align 6')
    A('LA_loop_e:')
    q = body(A, 0, q)
    assert q == q0, (q, q0)
    A('s_bitcmp1_b32 s%d, s%d' % (S_EV, S_T))
    A('s_cbranch_scc1 LA_ev_e')
    A('LA_cont_e:')
    A('s_add_u32 s%d, s%d, 1' % (S_T, S_T))
    q = body(A, 1, q)
    assert q == q0
    A('s_bitcmp1_b32 s%d, s%d' % (S_EV, S_T))
    A('s_cbranch_scc1 LA_ev_o')
    A('LA_cont_o:')
    A('s_add_u32 s%d, s%d, 1' % (S_T, S_T))
    A('s_cmp_lt_u32 s%d, 16' % S_T)
    A('s_cbranch_scc1 LA_loop_e')
    A('s_waitcnt lgkmcnt(0)')
    body(A, 0, [], tail=True)
    A('s_mov_b32 s%d, 2' % S_RET)
    A('s_branch LA_fin')
    event_handler(A, 0)
    event_handler(A, 1)
    finalize_block(A)
    safe_path(A)
    A('LA_att_done:')
    A('s_cmp_lg_u32 s%d, 0' % S_BADW)
    A('s_cbranch_scc1 LA_redo')
    A('LA_safe_done:')
    if G.OPT.get('its'):
        A('s_lshl_b32 s60, s2, 10')
        A('s_lshl_b32 s61, s%d, 8' % S_W)
        A('s_add_u32 s60, s60, s61')
        A('s_add_u32 s60, s60, 0x%x' % (G.TS_OFF + (1 << 20)))
        A('v_lshlrev_b32 v24, 2, v1')
        A('v_add_u32 v24, s60, v24')
        A('global_store_dword v24, v25, s[18:19]')
    if not G.OPT.get('fuse'): A('s_waitcnt vmcnt(0) lgkmcnt(0)')
    if OPT.get('report'):
        for r in REPORT: print('gapcost', r, sum(r))

def phase23(A, OPT):
    phase2(A, OPT)
    stamp(A)
    phase3(A, OPT)
```

```python
from asmlib import *
import gen as G
from gen import stamp, MFMA, srd, PART_OFF, CTX_OFF, HN_OFF, H_OFF, RS_OFF, Y_OFF, FLG_OFF, S_H, S_J, S_W, flag_store
from gen_tail import rnd_bf16, red8, xwave_sum
import gen_attn as GA

CTXF = 4096
PARTF = 16384
SENT = 0x7fc0dead
NWG_D = 54
NWG_DN = 20
ACT_OFF = Y_OFF
WDB = 4096
S_C, S_I, S_J2 = 12, 13, 15

def roles(A):
    A('s_and_b32 s%d, s2, 3' % S_C)
    A('s_bfe_u32 s%d, s2, 0x10002' % S_I)
    A('s_lshr_b32 s%d, s2, 3' % S_J2)
    A('s_and_b32 s60, s%d, 7' % S_J2)
    A('s_lshl_b32 s%d, s%d, 3' % (S_I, S_I))
    A('s_add_u32 s%d, s%d, s60' % (S_I, S_I))
    A('s_lshr_b32 s%d, s%d, 3' % (S_J2, S_J2))

def ctxf_addr_lines(qb_sgpr):
    return ('s_lshl_b32 s60, s%d, 2\ns_lshr_b32 s61, s%d, 3\ns_add_u32 s60, s60, s61\ns_lshl_b32 s60, s60, 7\n'
            's_and_b32 s61, s%d, 7\ns_lshl_b32 s61, s61, 2\ns_add_u32 s60, s60, s61\ns_add_u32 s60, s60, %d' % (qb_sgpr, S_H, S_H, CTXF))

def zero_flags(A):
    A('s_sub_u32 s79, 15, s%d' % S_J)
    flag_store(A, ctxf_addr_lines(S_J), '0', 27)
    flag_store(A, ctxf_addr_lines(79), '0', 27)
    if G.OPT.get('op2', 0):
        roles2(A)
        flag_store(A, partf2_lines(QX), '0', 27)
        flag_store(A, partf2_lines(QY), '0', 27)
        roles(A)
    else:
        roles(A)
        flag_store(A, 's_lshl_b32 s60, s%d, 7\ns_lshl_b32 s61, s%d, 4\ns_add_u32 s60, s60, s61\ns_lshl_b32 s61, s%d, 2\ns_add_u32 s60, s60, s61\ns_add_u32 s60, s60, %d' % (S_I, S_J2, S_C, PARTF), '0', 27)
    A('s_lshl_b32 s60, s%d, 7\ns_lshl_b32 s61, s%d, 5\ns_add_u32 s60, s60, s61\ns_lshl_b32 s61, s%d, 3\ns_add_u32 s60, s60, s61' % (S_I, S_J2, S_C))
    A('v_add_u32 v27, s60, v1\nv_lshlrev_b32 v27, 2, v27\nv_add_u32 v27, 0x%x, v27\nv_mov_b32 v28, 0x%x' % (RS_OFF, SENT))
    A('s_mov_b64 s[60:61], exec\ns_mov_b64 exec, 0xff')
    A('global_store_dword v27, v28, s[18:19] sc1')
    A('s_mov_b64 exec, s[60:61]')
    l = A.lab('Lyz')
    A('s_cmp_ge_u32 s2, 7\ns_cbranch_scc1 ' + l)
    A('v_mov_b32 v28, -1\nv_mov_b32 v29, -1\nv_mov_b32 v30, -1\nv_mov_b32 v31, -1')
    A('s_lshl_b32 s60, s2, 10\ns_add_u32 s60, s60, 0x%x' % ACT_OFF)
    A('v_lshlrev_b32 v27, 4, v1\nv_add_u32 v27, s60, v27')
    A('global_store_dwordx4 v27, v[28:31], s[18:19] sc1')
    A(l + ':')

def hn_sentinel_list():
    pre = ['s_and_b32 s12, s2, 3', 's_bfe_u32 s13, s2, 0x10002', 's_lshr_b32 s15, s2, 3', 's_and_b32 s60, s15, 7', 's_lshl_b32 s13, s13, 3', 's_add_u32 s13, s13, s60', 's_lshr_b32 s15, s15, 3',
           's_lshl_b32 s60, s13, 7', 's_lshl_b32 s61, s15, 5', 's_add_u32 s60, s60, s61', 's_lshl_b32 s61, s12, 3', 's_add_u32 s60, s60, s61', 's_mul_i32 s15, s60, 1280',
           'v_mov_b32 v52, -1', 'v_mov_b32 v53, -1', 'v_mov_b32 v54, -1', 'v_mov_b32 v55, -1', 'v_lshlrev_b32 v51, 4, v0']
    out = []
    for n, off in enumerate((HN_OFF, H_OFF)):
        setup = ['s_add_u32 s61, s15, 0x%x' % off, 's_add_u32 s56, s18, s61', 's_addc_u32 s57, s19, 0', 's_mov_b32 s58, 10240', 's_mov_b32 s59, 0x20000']
        for i in range(3):
            t = []
            if n == 0 and i == 0: t += pre
            if i == 0: t += setup
            t += ['s_mov_b32 s61, %d' % (i * 4096), 'buffer_store_dwordx4 v[52:55], v51, s[56:59], s61 offen sc1']
            out.append('\n'.join(t))
    return out

def signal_ctx(A, qb_sgpr):
    l = A.lab('Lcs')
    A('s_cmp_lg_u32 s%d, 0' % S_W); A('s_cbranch_scc1 ' + l)
    flag_store(A, ctxf_addr_lines(qb_sgpr), '1', 22)
    A(l + ':')

def wo_warm(A):
    roles(A)
    A('s_load_dwordx2 s[84:85], s[0:1], 40')
    A('s_waitcnt lgkmcnt(0)')
    A('s_and_b32 s85, s85, 0xffff\ns_mov_b32 s86, %d\ns_mov_b32 s87, 0x20000' % (4096 * 1280))
    A('s_lshl_b32 s60, s%d, 10\ns_and_b32 s61, s%d, 7\ns_lshl_b32 s61, s61, 7\ns_add_u32 s60, s60, s61\ns_lshl_b32 s61, s%d, 5\ns_add_u32 s60, s60, s61' % (S_C, S_I, S_W))
    A('s_mul_i32 s61, s%d, 320' % S_J2)
    A('v_lshrrev_b32 v22, 1, v1\nv_add_u32 v22, s60, v22\nv_mul_u32_u24 v22, 1280, v22\nv_add_u32 v22, s61, v22')
    A('v_and_b32 v23, 1, v1\nv_lshlrev_b32 v23, 7, v23\nv_add_u32 v23, v22, v23')
    A('buffer_load_dword v24, v23, s[84:87], 0 offen')
    A('buffer_load_dword v24, v22, s[84:87], 0 offen offset:300')

def outproj(A):
    w = S_W
    A('s_load_dwordx2 s[8:9], s[0:1], 40')
    roles(A)
    A('s_waitcnt lgkmcnt(0)')
    A('s_mul_i32 s60, s%d, %d' % (S_C, 1024 * 1280))
    A('s_mul_i32 s61, s%d, 320' % S_J2)
    A('s_add_u32 s60, s60, s61')
    srd(A, 24, 8, 9, 's60', 0)
    A('s_sub_u32 s26, %d, s60' % (4096 * 1280))
    A('s_lshl_b32 s60, s%d, 2\ns_add_u32 s60, s60, s%d\ns_lshl_b32 s60, s60, 8' % (S_I, w))
    A('s_lshl_b32 s61, s%d, 6\ns_add_u32 s60, s60, s61\ns_lshl_b32 s60, s60, 10' % S_C)
    A('s_add_u32 s60, s60, 0x%x' % CTX_OFF)
    srd(A, 28, 18, 19, 's60', 65536)
    A('s_lshl_b32 s60, s%d, 6\ns_lshl_b32 s61, s%d, 2\ns_add_u32 s60, s60, s61\ns_add_u32 s60, s60, s%d' % (S_C, S_I, w))
    A('s_mul_i32 s60, s60, 20\ns_mul_i32 s61, s%d, 5\ns_add_u32 s60, s60, s61\ns_lshl_b32 s60, s60, 11' % S_J2)
    A('s_add_u32 s60, s60, 0x%x' % PART_OFF)
    srd(A, 32, 18, 19, 's60', 10240)
    A('v_lshlrev_b32 v3, 4, v1')
    A('s_mul_i32 s60, s%d, 320' % w)
    A('s_movk_i32 s61, 3277')
    for i in range(5):
        A('v_add_u32 v10, s60, v1')
        A('v_add_u32 v10, %d, v10' % (i * 64))
        A('v_mul_lo_u32 v11, v10, s61')
        A('v_lshrrev_b32 v11, 16, v11')
        A('v_mul_u32_u24 v12, 20, v11')
        A('v_sub_u32 v12, v10, v12')
        A('v_mul_u32_u24 v11, 1280, v11')
        A('v_lshlrev_b32 v12, 4, v12')
        A('v_add_u32 v11, v11, v12')
        if i < 4 and i > 0: A('v_subrev_u32 v11, %d, v11' % (i * 1024))
        A('v_mov_b32 v%d, v11' % (4 + i))
    A('v_lshrrev_b32 v10, 5, v1\nv_lshlrev_b32 v10, 2, v10')
    A('v_lshrrev_b32 v11, 2, v1\nv_and_b32 v11, 3, v11\nv_add_u32 v10, v10, v11')
    A('v_mul_u32_u24 v10, 320, v10')
    A('v_lshrrev_b32 v11, 4, v1\nv_and_b32 v11, 1, v11\nv_lshlrev_b32 v11, 5, v11\nv_add_u32 v10, v10, v11')
    A('v_and_b32 v11, 3, v1\nv_lshlrev_b32 v11, 3, v11\nv_add_u32 v14, v10, v11')
    A('v_add_u32 v15, 40960, v14')
    A('s_mul_i32 s62, s%d, 5120' % w)
    ffn_srd(A)
    GU = ffn_gu_list()
    NST = 16
    RING = 32; PF = 30
    CR = 128
    def dma(st):
        pre = ['s_add_u32 m0, s62, %d' % ((st & 3) * 20480), 's_mov_b32 s63, %d' % (st * 64 * 1280)]
        ins = ['buffer_load_dwordx4 v%d, s[24:27], s63 offen offset:%d lds' % (4 + i, i * 1024) for i in range(4)]
        ins.append('s_add_u32 m0, s62, %d\ns_nop 0\nbuffer_load_dwordx4 v8, s[24:27], s63 offen lds' % ((st & 3) * 20480 + 4096))
        return pre, ins
    def cload(ks):
        return ('buffer_load_dwordx4 %s, v3, s[28:31], s%d offen offset:%d sc1' % (vr(CR + (ks % RING) * 4, 4), 64 + ((ks // 4) & 1), (ks % 4) * 1024), ('X', ks))
    def csoff(grp): return 's_mov_b32 s%d, %d' % (64 + (grp & 1), grp * 4096)
    def wreads(ks):
        st, sidx = ks // 4, ks % 4
        b = (ks % 3) * 20
        out = []
        for mt in range(5):
            for u in range(2):
                off = (st & 3) * 20480 + (16 * sidx + 8 * u) * 320 + mt * 64
                base = 14 if off < 40960 else 15
                out.append(('ds_read_b64_tr_b16 %s, v%d offset:%d' % (ar(b + mt * 4 + u * 2, 2), base, off % 40960 if base == 15 else off), ('W', ks, mt, u)))
        return out
    A('s_barrier')
    vq = [('ST',)] * 8
    for st in range(3):
        pre, ins = dma(st); A('\n'.join(pre + ins)); vq += [('D', st)] * 5
    A('s_waitcnt vmcnt(15)'); vq = vq[8:]
    A('s_barrier')
    signal_ctx(A, S_J)
    l15 = A.lab('Lt15')
    l16 = A.lab('Lt16')
    A('s_bitcmp1_b32 s%d, 0' % GA.S_BADW); A('s_cbranch_scc1 ' + l16)
    A('s_cmp_lg_u32 s%d, 15' % GA.S_TS); A('s_cbranch_scc1 ' + l15)
    A(l16 + ':')
    signal_ctx(A, GA.S_TS)
    A(l15 + ':')
    stamp(A)
    A('v_and_b32 v10, 7, v1\nv_lshlrev_b32 v10, 2, v10')
    A('s_lshl_b32 s60, s%d, 2\ns_add_u32 s60, s60, s%d\ns_lshl_b32 s60, s60, 7\ns_add_u32 s60, s60, 0x%x' % (S_I, S_C, FLG_OFF + CTXF))
    A('v_add_u32 v10, s60, v10')
    GA.spin_flags(A, 10, 11, 0xff, extra=[121, 122, 123])
    vq = []
    stamp(A)
    for ks in range(PF):
        t, tok = cload(ks)
        if ks % 4 == 0: A(csoff(ks // 4))
        A(t); vq.append(tok)
    A('s_barrier')
    q = []
    for k0 in range(2):
        for n_, (t, tok) in enumerate(wreads(k0)):
            if len(q) == 15:
                A('s_waitcnt lgkmcnt(10)'); q = q[5:]
            A(t); q.append(tok)
    ACC = 32
    for st in range(NST):
        if G.OPT.get('ops'):
            A('s_memrealtime s[80:81]\ns_waitcnt lgkmcnt(0)\nv_writelane_b32 v126, s80, %d' % st); q = []
        sp = []; fl = []
        for sidx in range(4):
            ks = st * 4 + sidx
            b = (ks % 3) * 20
            for mt in range(5):
                r = ACC + mt * 16
                c = '0' if ks == 0 else vr(r, 16)
                sp.append(dict(t='%s %s, %s, %s, %s' % (MFMA, vr(r, 16), ar(b + mt * 4, 4), vr(CR + (ks % RING) * 4, 4), c),
                               need=[('W', ks, m2, u) for m2 in range(5) for u in range(2)] if mt == 0 else [], needvm=[('X', ks)] if mt == 0 else []))
            g0 = sidx * 5
            if ks + 2 < 64:
                rdy = g0 - 1
                if sidx == 2: rdy = 10
                for i, (t, tok) in enumerate(wreads(ks + 2)):
                    fl.append(dict(t=t, pos=g0 + i * 0.45, ready=rdy, due=g0 + 5, cost=5, ds=tok, stream='lds'))
            if ks + PF < 64:
                k2 = ks + PF
                t, tok = cload(k2)
                if k2 % 4 == 0: t = csoff(k2 // 4) + '\n' + t
                fl.append(dict(t=t, pos=(15.2 + 1.1 * sidx) if G.OPT.get('oplate', 1) else g0 + 2.0, ready=(15 if G.OPT.get('oplate', 1) else -1), cost=18, vm=tok, stream='vm'))
            if G.OPT.get('gulate', 0) == 0 and 4 <= ks < 44 and ks % 2 == 0:
                fl.append(dict(t=GU[(ks - 4) // 2], pos=1.0 + g0 * 0.5, cost=18, vm=('G',), stream='vm3'))
        if st + 1 < NST:
            if G.OPT.get('opb'):
                fl.append(dict(t='s_memtime s[80:81]\ns_waitcnt lgkmcnt(0)\nv_writelane_b32 v126, s80, %d' % (st * 3), pos=8.9, ready=9, due=9, cost=6, stream='bar'))
                fl.append(dict(t='s_nop 0', pos=8.95, ready=9, due=9, cost=1, needvm=[('D', st + 1)], stream='bar'))
                fl.append(dict(t='s_memtime s[80:81]\ns_waitcnt lgkmcnt(0)\nv_writelane_b32 v126, s80, %d\ns_barrier\ns_memtime s[80:81]\ns_waitcnt lgkmcnt(0)\nv_writelane_b32 v126, s80, %d' % (st * 3 + 1, st * 3 + 2), pos=9.0, ready=9, due=9, cost=6, stream='bar'))
            else:
                fl.append(dict(t='s_barrier', pos=9.0, ready=9, due=9, cost=6, needvm=[('D', st + 1)], stream='bar'))
            if st + 3 < NST:
                pre, ins = dma(st + 3)
                for i, t in enumerate(ins):
                    tt_ = ('\n'.join(pre) + '\n' + t) if i == 0 else ((pre[0] + '\ns_nop 0\n' + t) if i < 4 else t)
                    fl.append(dict(t=tt_, pos=10.1 + 1.0 * i, ready=10, cost=18, vm=('D', st + 3), stream='vm2'))
        q, vq = pack(A, sp, fl, q, vm_state=vq)
    A('s_nop 15')
    stamp(A)
    if G.OPT.get('ops'):
        A('s_memrealtime s[80:81]\ns_waitcnt lgkmcnt(0)\nv_writelane_b32 v126, s80, 16')
    if G.OPT.get('opb'):
        A('s_lshl_b32 s60, s2, 10\ns_lshl_b32 s61, s%d, 8\ns_add_u32 s60, s60, s61\ns_add_u32 s60, s60, 0x%x' % (S_W, G.TS_OFF + (4 << 20)))
        A('v_lshlrev_b32 v125, 2, v1\nv_add_u32 v125, s60, v125\nglobal_store_dword v125, v126, s[18:19]')
    for mt in range(5):
        for ap in range(2):
            r = ACC + mt * 16 + ap * 8
            d = 112 + ((mt * 2 + ap) % 3) * 4
            for j in range(4):
                A('v_cvt_pk_bf16_f32 v%d, v%d, v%d' % (d + j, r + 2 * j, r + 2 * j + 1))
            if (mt * 2 + ap) % 4 == 0: A('s_mov_b32 s60, %d' % ((mt * 2 + ap) * 1024))
            A('buffer_store_dwordx4 %s, v3, s[32:35], s60 offen offset:%d sc1' % (vr(d, 4), ((mt * 2 + ap) % 4) * 1024))
    A('s_waitcnt vmcnt(0)')
    A('s_barrier')
    l = A.lab('Lps')
    A('s_cmp_lg_u32 s%d, 0' % w); A('s_cbranch_scc1 ' + l)
    flag_store(A, 's_lshl_b32 s60, s%d, 7\ns_lshl_b32 s61, s%d, 4\ns_add_u32 s60, s60, s61\ns_lshl_b32 s61, s%d, 2\ns_add_u32 s60, s60, s61\ns_add_u32 s60, s60, %d' % (S_I, S_J2, S_C, PARTF), '1', 10)
    A(l + ':')
    if G.OPT.get('ops'): A('s_memrealtime s[80:81]\ns_waitcnt lgkmcnt(0)\nv_writelane_b32 v126, s80, 17')


def roles2(A):
    A('s_and_b32 s12, s2, 3')
    A('s_bfe_u32 s13, s2, 0x30002')
    A('s_lshr_b32 s15, s2, 5')

def partf2_lines(qb_lines):
    return qb_lines + '\ns_lshl_b32 s60, s61, 7\ns_lshl_b32 s61, s15, 4\ns_add_u32 s60, s60, s61\ns_lshl_b32 s61, s12, 2\ns_add_u32 s60, s60, s61\ns_add_u32 s60, s60, %d' % PARTF
QX = 's_sub_u32 s61, 15, s13'
QY = 's_mov_b32 s61, s13'

def wo_warm2(A):
    A('s_load_dwordx2 s[84:85], s[0:1], 40')
    A('s_waitcnt lgkmcnt(0)')
    A('s_and_b32 s85, s85, 0xffff\ns_mov_b32 s86, %d\ns_mov_b32 s87, 0x20000' % (4096 * 1280))
    A('s_and_b32 s60, s2, 3\ns_lshl_b32 s60, s60, 10\ns_lshr_b32 s61, s2, 3\ns_lshl_b32 s61, s61, 5\ns_add_u32 s60, s60, s61\ns_lshl_b32 s61, s%d, 3\ns_add_u32 s60, s60, s61' % S_W)
    A('s_mul_i32 s60, s60, 1280')
    A('v_lshlrev_b32 v22, 7, v1\nv_add_u32 v22, s60, v22')
    A('buffer_load_dword v24, v22, s[84:87], 0 offen')
    A('v_add_u32 v23, 8192, v22\nv_cmp_gt_u32 vcc, 16, v1\nv_mov_b32 v22, 0x7ffffff0\ns_nop 0\nv_cndmask_b32 v23, v22, v23, vcc')
    A('buffer_load_dword v24, v23, s[84:87], 0 offen')

def op2_variant(A, nX, nY, GU):
    w = S_W
    KS = 8
    SL = 24576; NSL = 3; RING = 48; CRA = 64
    NSG = 128 // KS * 1
    task = [dict(n=nX, W=24, C=28, P=32, vo=4, vb=10, m0=62, acc=32), dict(n=nY, W=40, C=36, P=56, vo=7, vb=17, m0=65, acc=32 + nX * 16)]
    for T in task:
        n = T['n']
        A('s_mul_i32 s%d, s%d, %d' % (T['m0'], w, n * 1024))
        A('s_mul_i32 s60, s%d, %d' % (w, n * 64))
        for i in range(n):
            A('v_add_u32 v24, s60, v1\nv_add_u32 v24, %d, v24' % (i * 64))
            if n == 2:
                A('v_lshrrev_b32 v25, 3, v24\nv_and_b32 v26, 7, v24')
                A('v_lshrrev_b32 v27, 1, v25\nv_and_b32 v27, 1, v27\nv_lshlrev_b32 v27, 2, v27\nv_xor_b32 v26, v26, v27')
            else:
                A('s_movk_i32 s61, 5462\nv_mul_lo_u32 v25, v24, s61\nv_lshrrev_b32 v25, 16, v25\nv_mul_u32_u24 v26, 12, v25\nv_sub_u32 v26, v24, v26')
            A('v_mul_u32_u24 v25, 1280, v25\nv_lshlrev_b32 v26, 4, v26\nv_add_u32 v25, v25, v26')
            if i: A('v_subrev_u32 v25, %d, v25' % (i * 1024))
            A('v_mov_b32 v%d, v25' % (T['vo'] + i))
        st_ = n * 64
        A('v_lshrrev_b32 v24, 5, v1\nv_lshlrev_b32 v24, 2, v24\nv_lshrrev_b32 v25, 2, v1\nv_and_b32 v25, 3, v25\nv_add_u32 v24, v24, v25')
        A('v_mul_u32_u24 v24, %d, v24' % st_)
        A('v_lshrrev_b32 v26, 4, v1\nv_and_b32 v26, 1, v26\nv_lshlrev_b32 v26, 5, v26\nv_add_u32 v24, v24, v26')
        A('v_and_b32 v26, 3, v1\nv_lshlrev_b32 v26, 3, v26\nv_add_u32 v24, v24, v26')
        if n == 2:
            A('v_lshrrev_b32 v25, 1, v25\nv_lshlrev_b32 v25, 6, v25')
            A('v_add_u32 v%d, v24, v25' % T['vb'])
            A('v_xor_b32 v25, 64, v25\nv_add_u32 v%d, v24, v25' % (T['vb'] + 1))
            A('v_add_u32 v%d, %d, v%d\nv_add_u32 v%d, %d, v%d' % (T['vb'] + 2, 2 * SL, T['vb'], T['vb'] + 3, 2 * SL, T['vb'] + 1))
        else:
            A('v_mov_b32 v%d, v24\nv_add_u32 v%d, %d, v24' % (T['vb'], T['vb'] + 2, 2 * SL))
    HS = NSG // 2
    def tk(sg): return task[0] if sg < HS else task[1]
    def dma(sg):
        T = tk(sg); st = sg % HS; n = T['n']
        out = []
        for hf in range(2):
            for i in range(n):
                out.append('s_add_u32 m0, s%d, %d\ns_mov_b32 s63, %d\nbuffer_load_dwordx4 v%d, s[%d:%d], s63 offen offset:%d lds' %
                           (T['m0'], (sg % NSL) * SL + hf * n * 4096, (st * 128 + hf * 64) * 1280, T['vo'] + i, T['W'], T['W'] + 3, i * 1024))
        return out
    def cload(kk):
        T = task[0] if kk < 64 else task[1]; ks = kk % 64
        sreg = 70 + ((kk // 4) & 1)
        t = 'buffer_load_dwordx4 %s, v3, s[%d:%d], s%d offen offset:%d sc1' % (ar(CRA + (kk % RING) * 4, 4), T['C'], T['C'] + 3, sreg, (ks % 4) * 1024)
        if ks % 4 == 0: t = 's_mov_b32 s%d, %d\n' % (sreg, (ks // 4) * 4096) + t
        return t, ('X', kk)
    def wreads(kk):
        sg = kk // KS; T = tk(sg); n = T['n']; sidx = kk % KS
        b = (kk % 3) * 12
        out = []
        slot = sg % NSL
        for mt in range(n):
            for u in range(2):
                off = (slot % 2) * SL + (16 * sidx + 8 * u) * n * 64
                if n == 2: reg = T['vb'] + mt + (2 if slot >= 2 else 0)
                else:
                    reg = T['vb'] + (2 if slot >= 2 else 0); off += mt * 64
                assert off < 65536
                out.append(('ds_read_b64_tr_b16 %s, v%d offset:%d' % (ar(b + mt * 4 + u * 2, 2), reg, off), ('W', kk, mt, u)))
        return out
    def flagwait(qb_line, vtmp):
        A('v_and_b32 v%d, 7, v1\nv_lshlrev_b32 v%d, 2, v%d' % (vtmp, vtmp, vtmp))
        A(qb_line + '\ns_lshl_b32 s60, s61, 2\ns_add_u32 s60, s60, s12\ns_lshl_b32 s60, s60, 7\ns_add_u32 s60, s60, 0x%x' % (FLG_OFF + CTXF))
        A('v_add_u32 v%d, s60, v%d' % (vtmp, vtmp))
        GA.spin_flags(A, vtmp, vtmp + 1, 0xff)
    PFX = G.OPT.get('pfx', 44)
    KY = 64 - G.OPT.get('pfy%d' % nX, 24 if nX == 2 else 32)
    A('s_barrier')
    vq = [('ST',)] * 8
    DW = 2
    for sg in range(DW):
        for t in dma(sg): A(t); vq.append(('D', sg))
    A('s_waitcnt vmcnt(%d)' % (len(vq) - 8)); vq = vq[8:]
    A('s_barrier')
    signal_ctx(A, S_J)
    l15 = A.lab('Lt15'); l16 = A.lab('Lt16')
    A('s_bitcmp1_b32 s%d, 0' % GA.S_BADW); A('s_cbranch_scc1 ' + l16)
    A('s_cmp_lg_u32 s%d, 15' % GA.S_TS); A('s_cbranch_scc1 ' + l15)
    A(l16 + ':')
    signal_ctx(A, GA.S_TS)
    A(l15 + ':')
    stamp(A)
    flagwait(QX, 21)
    vq = []
    stamp(A)
    issued = 0
    for kk in range(PFX):
        t, tok = cload(kk); A(t); vq.append(tok); issued = kk + 1
    A('s_barrier')
    q = []
    for k0 in range(2):
        for (t, tok) in wreads(k0): A(t); q.append(tok)
    for sg in range(NSG):
        if G.OPT.get('op2s'):
            A('s_memtime s[80:81]\ns_waitcnt lgkmcnt(0)\nv_writelane_b32 v126, s80, %d' % sg); q = []
        T = tk(sg); n = T['n']
        NG_ = KS * n
        sp = []; fl = []
        BAR = (KS - 2) * n - 1
        for sidx in range(KS):
            kk = sg * KS + sidx
            b = (kk % 3) * 12
            for mt in range(n):
                r = T['acc'] + mt * 16
                c = '0' if kk % 64 == 0 else vr(r, 16)
                sp.append(dict(t='%s %s, %s, %s, %s' % (MFMA, vr(r, 16), ar(b + mt * 4, 4), ar(CRA + (kk % RING) * 4, 4), c),
                               need=[('W', kk, m2, u) for m2 in range(n) for u in range(2)] if mt == 0 else [], needvm=[('X', kk)] if mt == 0 else []))
            g0 = sidx * n
            if kk + 2 < 128:
                rdy = g0 - 1
                if sidx >= KS - 2: rdy = max(rdy, BAR + 1)
                rr = wreads(kk + 2)
                for i, (t, tok) in enumerate(rr):
                    fl.append(dict(t=t, pos=g0 + i * (n / float(len(rr))) * 0.9, ready=rdy, due=min(g0 + n, NG_ - 1), cost=5, ds=tok, stream='lds'))
        loads = []
        for sidx in range(KS):
            kk = sg * KS + sidx
            cnt = 0
            while issued < 128 and issued <= kk + PFX and (issued < 64 or kk >= KY) and cnt < 2 and issued - kk < RING - 1:
                if issued == 64 and sidx != 0 and not any(x[0] >= 64 for x in loads):
                    if kk - sidx < KY - (KS - 1): break
                loads.append((issued, sidx)); issued += 1; cnt += 1
        if any(x[0] == 64 for x in loads):
            flagwait(QY, 21)
            vq = []
        for j, (k2, sidx) in enumerate(loads):
            t, tok = cload(k2)
            fl.append(dict(t=t, pos=sidx * n + 0.5, ready=sidx * n - 1, cost=18, vm=tok, stream='vm'))
        if GU:
            for e in range(2):
                gi = (sg - 1) * 2 + e
                if 0 <= gi < 20: fl.append(dict(t=GU[gi], pos=2.0 + e * n * 3, cost=18, vm=('G',), stream='vm3'))
        if sg + 1 < NSG:
            if sg == NSG - 3:
                fl.append(dict(t='s_nop 0', pos=BAR - 0.5, ready=BAR - 1, due=BAR, cost=1, needvm=[('PS',)], stream='bar'))
            fl.append(dict(t='s_barrier', pos=BAR, ready=BAR, due=BAR, cost=6, needvm=[('D', sg + 1)], need=[('W', sg * KS + KS - 1, m2, u) for m2 in range(n) for u in range(2)], stream='bar'))
            if sg + DW < NSG:
                dd = dma(sg + DW)
                for i, t in enumerate(dd):
                    fl.append(dict(t=t, pos=0.7 + i * (BAR - 1.0) / len(dd), cost=18, vm=('D', sg + DW), stream='vm2'))
        if HS + 1 <= sg < HS + 1 + 2:
            for j in range((sg - HS - 1) * nX, (sg - HS) * nX):
                mt, ap = j // 2, j % 2
                r = task[0]['acc'] + mt * 16 + ap * 8
                d = 112 + (j % 3) * 4
                t = '\n'.join(['v_cvt_pk_bf16_f32 v%d, v%d, v%d' % (d + e, r + 2 * e, r + 2 * e + 1) for e in range(4)] +
                              ['s_mov_b32 s60, %d' % ((mt * 2 + ap) * 1024), 'buffer_store_dwordx4 %s, v3, s[%d:%d], s60 offen sc1' % (vr(d, 4), task[0]['P'], task[0]['P'] + 3)])
                fl.append(dict(t=t, pos=1.5 + (j % nX) * 3.0, cost=24, vm=('PS',), stream='vm4'))
        q, vq = pack(A, sp, fl, q, vm_state=vq)
        if sg == NSG - 3:
            l = A.lab('Lpx')
            A('s_cmp_lg_u32 s%d, 0' % w); A('s_cbranch_scc1 ' + l)
            flag_store(A, partf2_lines(QX), '1', 21)
            A(l + ':')
            vq.append(('F',))
    assert issued == 128
    if G.OPT.get('op2s'):
        A('s_memtime s[80:81]\ns_waitcnt lgkmcnt(0)\nv_writelane_b32 v126, s80, %d' % NSG)
        A('s_lshl_b32 s60, s2, 10\ns_lshl_b32 s61, s%d, 8\ns_add_u32 s60, s60, s61\ns_add_u32 s60, s60, 0x%x' % (S_W, G.TS_OFF + (4 << 20)))
        A('v_lshlrev_b32 v125, 2, v1\nv_add_u32 v125, s60, v125\nglobal_store_dword v125, v126, s[18:19]')
    A('s_nop 15')
    stamp(A)
    T = task[1]
    for mt in range(nY):
        for ap in range(2):
            r = T['acc'] + mt * 16 + ap * 8
            d = 112 + ((mt * 2 + ap) % 3) * 4
            for e in range(4):
                A('v_cvt_pk_bf16_f32 v%d, v%d, v%d' % (d + e, r + 2 * e, r + 2 * e + 1))
            A('s_mov_b32 s60, %d' % ((mt * 2 + ap) * 1024))
            A('buffer_store_dwordx4 %s, v3, s[%d:%d], s60 offen sc1' % (vr(d, 4), T['P'], T['P'] + 3))
    A('s_waitcnt vmcnt(0)')
    A('s_barrier')
    l = A.lab('Lps')
    A('s_cmp_lg_u32 s%d, 0' % w); A('s_cbranch_scc1 ' + l)
    flag_store(A, partf2_lines(QY), '1', 21)
    A(l + ':')

def outproj2(A):
    w = S_W
    A('s_load_dwordx2 s[8:9], s[0:1], 40')
    roles2(A)
    A('s_waitcnt lgkmcnt(0)')
    A('s_lshl_b32 s60, s15, 1\ns_mul_i32 s61, s15, 3')
    A('s_sub_u32 s63, s61, 4\ns_add_u32 s64, s60, 4')
    A('s_cmp_lt_u32 s15, 4')
    A('s_cselect_b32 s66, s60, s63')
    A('s_cselect_b32 s67, s61, s64')
    for (tcol, Wd, Cd, Pd, qline) in ((66, 24, 28, 32, QX), (67, 40, 36, 56, QY)):
        A('s_mul_i32 s60, s12, %d\ns_lshl_b32 s61, s%d, 6\ns_add_u32 s60, s60, s61' % (1024 * 1280, tcol))
        srd(A, Wd, 8, 9, 's60', 0)
        A('s_sub_u32 s%d, %d, s60' % (Wd + 2, 4096 * 1280))
        A(qline + '\ns_lshl_b32 s60, s61, 2\ns_add_u32 s60, s60, s%d\ns_mov_b32 s63, s60\ns_lshl_b32 s60, s60, 8\ns_lshl_b32 s61, s12, 6\ns_add_u32 s60, s60, s61\ns_lshl_b32 s60, s60, 10\ns_add_u32 s60, s60, 0x%x' % (w, CTX_OFF))
        srd(A, Cd, 18, 19, 's60', 65536)
        A('s_lshl_b32 s60, s12, 6\ns_add_u32 s60, s60, s63\ns_mul_i32 s60, s60, 20\ns_add_u32 s60, s60, s%d\ns_lshl_b32 s60, s60, 11\ns_add_u32 s60, s60, 0x%x' % (tcol, PART_OFF))
        srd(A, Pd, 18, 19, 's60', 6144)
    A('v_lshlrev_b32 v3, 4, v1')
    ffn_srd(A)
    GU = ffn_gu_list()
    lv = A.lab('Lop2b'); lj = A.lab('Lop2j')
    n0 = G.SCALL[0]; ns0 = G.NSTAMP[0]
    A('s_cmp_ge_u32 s15, 4'); A('s_cbranch_scc1 ' + lv)
    op2_variant(A, 2, 3, GU)
    A('s_branch ' + lj)
    A(lv + ':')
    G.SCALL[0] = n0; G.NSTAMP[0] = ns0
    op2_variant(A, 3, 2, GU)
    A(lj + ':')

def ffn_srd(A):
    A('s_load_dwordx4 s[4:7], s[0:1], 64')
    A('s_load_dwordx2 s[10:11], s[0:1], 80')
    A('s_waitcnt lgkmcnt(0)')
    A('s_min_u32 s61, s2, %d' % (NWG_D - 1))
    A('s_lshl_b32 s60, s61, 6')
    srd(A, 44, 4, 5, 's60', 0); A('s_sub_u32 s46, %d, s60' % (640 * 3456))
    srd(A, 48, 6, 7, 's60', 0); A('s_sub_u32 s50, %d, s60' % (640 * 3456))
    A('v_lshrrev_b32 v16, 2, v1\nv_mul_u32_u24 v16, 3456, v16\nv_and_b32 v17, 3, v1\nv_lshlrev_b32 v17, 4, v17\nv_add_u32 v16, v16, v17')
    A('s_mul_i32 s66, s%d, %d' % (S_W, 10 * 16 * 3456))
    A('s_mul_i32 s67, s%d, 10240' % S_W)
    A('s_cmp_ge_u32 s2, %d' % NWG_D)
    A('s_cselect_b32 s67, 90112, s67')
    A('s_cselect_b32 s46, 0, s46'); A('s_cselect_b32 s50, 0, s50')

def ffn_gu_list():
    out = []
    for mat, sd, base in ((0, 44, 81920), (1, 48, 122880)):
        for i in range(10):
            out.append('s_add_u32 m0, s67, %d\ns_add_u32 s68, s66, %d\nbuffer_load_dwordx4 v16, s[%d:%d], s68 offen lds' % (base + i * 1024, i * 16 * 3456, sd, sd + 3))
    return out

def ffn_wd(A):
    lw = A.lab('Lwd')
    A('s_sub_u32 s61, s2, %d' % NWG_D)
    A('s_cmp_ge_u32 s61, %d\ns_cbranch_scc1 %s' % (NWG_DN, lw))
    A('s_lshl_b32 s60, s61, 6')
    srd(A, 52, 10, 11, 's60', 0); A('s_sub_u32 s54, %d, s60' % (1728 * 1280))
    A('v_lshrrev_b32 v6, 2, v1\nv_mul_u32_u24 v6, 1280, v6\nv_and_b32 v5, 3, v1\nv_lshlrev_b32 v5, 4, v5\nv_add_u32 v6, v6, v5')
    A('s_mul_i32 s66, s%d, %d' % (S_W, 27 * 16 * 1280))
    A('s_mul_i32 s68, s%d, %d' % (S_W, 27 * 1024))
    A('s_add_u32 s68, s68, %d' % WDB)
    for i in range(27):
        A('s_add_u32 m0, s68, %d' % (i * 1024))
        A('s_add_u32 s69, s66, %d' % (i * 16 * 1280))
        A('buffer_load_dwordx4 v6, s[52:55], s69 offen lds')
    A(lw + ':')

LNB = 0
def red8x(A, regs, temps):
    A('s_nop 1')
    for x in regs:
        A('v_add_f32_dpp v%d, v%d, v%d row_ror:8 row_mask:0xf bank_mask:0xf' % (x, x, x))
    A('s_nop 0')
    for x, t in zip(regs, temps):
        A('ds_swizzle_b32 v%d, v%d offset:0x401F' % (t, x))
    A('s_waitcnt lgkmcnt(0)')
    for x, t in zip(regs, temps):
        A('v_add_f32 v%d, v%d, v%d' % (x, x, t))
    for x, t in zip(regs, temps):
        A('v_mov_b32 v%d, v%d' % (t, x))
    A('s_nop 1')
    for x, t in zip(regs, temps):
        A('v_permlane32_swap_b32 v%d, v%d' % (x, t))
    A('s_nop 1')
    for x, t in zip(regs, temps):
        A('v_add_f32 v%d, v%d, v%d' % (x, x, t))

def ln2(A):
    w = S_W
    ops = G.OPT.get('ops')
    def fst(i):
        if ops: A('s_memrealtime s[80:81]\ns_waitcnt lgkmcnt(0)\nv_writelane_b32 v126, s80, %d' % i)
    roles(A)
    A('s_load_dwordx2 s[4:5], s[0:1], 0')
    A('s_load_dwordx2 s[6:7], s[0:1], 56')
    A('s_load_dwordx2 s[8:9], s[0:1], 88')
    A('s_lshl_b32 s20, s%d, 2\ns_add_u32 s20, s20, s%d' % (S_I, S_J2))
    A('s_mov_b32 s21, s%d' % S_C)
    A('s_waitcnt lgkmcnt(0)')
    A('s_mov_b32 s60, 0x%x' % PART_OFF)
    srd(A, 24, 18, 19, 's60', 4 * 64 * 20 * 2048)
    srd(A, 28, 4, 5, None, 2048 * 1280)
    srd(A, 32, 8, 9, None, 2048 * 1280)
    A('s_mov_b32 s60, 0x%x' % HN_OFF); srd(A, 36, 18, 19, 's60', 2048 * 1280)
    A('s_mov_b32 s60, 0x%x' % H_OFF); srd(A, 56, 18, 19, 's60', 2048 * 1280)
    srd(A, 84, 6, 7, None, 1280)
    A('v_and_b32 v3, 7, v1\nv_lshrrev_b32 v4, 3, v1\nv_lshrrev_b32 v5, 1, v4\nv_and_b32 v6, 1, v4')
    A('v_lshlrev_b32 v7, 5, v6\nv_add_u32 v7, v7, v3')
    A('s_lshl_b32 s60, s21, 3\nv_add_u32 v7, s60, v7\nv_lshlrev_b32 v7, 4, v7')
    A('v_lshrrev_b32 v14, 1, v5\nv_lshlrev_b32 v14, 10, v14\nv_add_u32 v7, v7, v14')
    A('v_and_b32 v14, 1, v5\nv_lshlrev_b32 v14, 3, v14\nv_add_u32 v7, v7, v14')
    A('s_mul_i32 s61, s20, 20\ns_add_u32 s61, s61, s%d\ns_lshl_b32 s61, s61, 11' % w)
    A('s_mov_b32 s70, s61')
    A('v_lshlrev_b32 v15, 3, v5\nv_lshlrev_b32 v16, 2, v6\nv_add_u32 v15, v15, v16')
    A('s_lshl_b32 s60, s%d, 5\nv_add_u32 v15, s60, v15\nv_lshlrev_b32 v15, 1, v15' % w)
    A('s_lshl_b32 s60, s20, 5\ns_lshl_b32 s61, s21, 3\ns_add_u32 s60, s60, s61\nv_add_u32 v16, s60, v3')
    A('s_movk_i32 s60, 1280\nv_mul_lo_u32 v17, v16, s60\nv_add_u32 v17, v17, v15')
    for k in range(5):
        A('buffer_load_dwordx2 %s, v17, s[28:31], 0 offen offset:%d' % (vr(112 + 2 * k, 2), k * 256))
    for k in range(5):
        A('buffer_load_dwordx2 %s, v15, s[84:87], 0 offen offset:%d' % (vr(18 + 2 * k, 2), k * 256))
    A('v_lshlrev_b32 v8, 4, v3\nv_add_u32 v8, %d, v8' % LNB)
    A('s_lshl_b32 s60, s%d, 7\nv_add_u32 v9, s60, v8' % w)
    A('v_and_b32 v10, %d, v1\nv_lshlrev_b32 v10, 2, v10' % (31 if G.OPT.get('op2', 0) else 15))
    A('s_lshl_b32 s60, s%d, 7\ns_add_u32 s60, s60, 0x%x' % (S_I, FLG_OFF + PARTF))
    A('v_add_u32 v10, s60, v10')
    GA.spin_flags(A, 10, 11, 0xffffffff if G.OPT.get('op2', 0) else 0xffff, extra=[160, 161, 162])
    stamp(A)
    fst(18)
    PB = 32
    for k in range(5):
        for c in range(4):
            A('s_add_u32 s62, s70, %d' % (c * 64 * 20 * 2048 + k * 4 * 2048))
            A('buffer_load_dwordx2 %s, v7, s[24:27], s62 offen sc1' % vr(PB + (k * 4 + c) * 2, 2))
    NG = 0
    if G.OPT.get('gulate', 0):
        A('v_lshrrev_b32 v150, 2, v1\nv_mul_u32_u24 v150, 3456, v150\nv_and_b32 v151, 3, v1\nv_lshlrev_b32 v151, 4, v151\nv_add_u32 v150, v150, v151')
        for t in ffn_gu_list(): A(t.replace('v16,', 'v150,'))
        NG = 20
    A('s_waitcnt vmcnt(%d)' % (20 + NG))
    for k in range(5):
        for j in range(2):
            A('v_lshlrev_b32 v%d, 16, v%d' % (72 + 4 * k + 2 * j, 112 + 2 * k + j))
            A('v_and_b32 v%d, 0xffff0000, v%d' % (73 + 4 * k + 2 * j, 112 + 2 * k + j))
            A('v_lshlrev_b32 v%d, 16, v%d' % (92 + 4 * k + 2 * j, 18 + 2 * k + j))
            A('v_and_b32 v%d, 0xffff0000, v%d' % (93 + 4 * k + 2 * j, 18 + 2 * k + j))
    A('v_mov_b32 v28, 0\nv_mov_b32 v29, 0\nv_mov_b32 v30, 0\nv_mov_b32 v31, 0')
    HB = 128
    for k in range(5):
        A('s_waitcnt vmcnt(%d)' % (16 - 4 * k + NG + k))
        if k == 0: fst(19)
        for e in range(4):
            d = HB + 4 * k + e
            src = [PB + (k * 4 + c) * 2 + (e >> 1) for c in range(4)]
            t0, t1 = 148, 149
            op = (lambda dst, s_: 'v_lshlrev_b32 v%d, 16, v%d' % (dst, s_)) if e % 2 == 0 else (lambda dst, s_: 'v_and_b32 v%d, 0xffff0000, v%d' % (dst, s_))
            A(op(d, src[0])); A(op(t0, src[1])); A('v_add_f32 v%d, v%d, v%d' % (d, d, t0))
            A(op(t0, src[2])); A(op(t1, src[3])); A('v_add_f32 v%d, v%d, v%d' % (t0, t0, t1))
            A('v_add_f32 v%d, v%d, v%d' % (d, d, t0))
        for j in range(2):
            a0, a1 = HB + 4 * k + 2 * j, HB + 4 * k + 2 * j + 1
            A('v_cvt_pk_bf16_f32 v148, v%d, v%d' % (a0, a1))
            A('v_lshlrev_b32 v%d, 16, v148' % a0); A('v_and_b32 v%d, 0xffff0000, v148' % a1)
            A('v_add_f32 v%d, v%d, v%d' % (a0, a0, 72 + 4 * k + 2 * j)); A('v_add_f32 v%d, v%d, v%d' % (a1, a1, 73 + 4 * k + 2 * j))
            A('v_cvt_pk_bf16_f32 v%d, v%d, v%d' % (112 + 2 * k + j, a0, a1))
            A('v_lshlrev_b32 v%d, 16, v%d' % (a0, 112 + 2 * k + j)); A('v_and_b32 v%d, 0xffff0000, v%d' % (a1, 112 + 2 * k + j))
        A('buffer_store_dwordx2 %s, v17, s[56:59], 0 offen offset:%d sc1' % (vr(112 + 2 * k, 2), k * 256))
        for e in range(4):
            d = HB + 4 * k + e
            A('v_add_f32 v28, v28, v%d' % d); A('v_fmac_f32 v29, v%d, v%d' % (d, d))
            A('v_fmac_f32 v30, v%d, v%d' % (d, 92 + 4 * k + e)); A('v_add_f32 v31, v31, v%d' % (92 + 4 * k + e))
    fst(22)
    red8x(A, [28, 29, 30, 31], [24, 25, 26, 27])
    A('ds_write_b128 v9, v[28:31]')
    A('s_waitcnt lgkmcnt(0)')
    A('s_barrier')
    for ww in range(4):
        A('ds_read_b128 %s, v8 offset:%d' % (vr(32 + 4 * ww, 4), ww * 128))
    A('s_waitcnt lgkmcnt(0)')
    for e in range(4):
        A('v_add_f32 v%d, v%d, v%d' % (32 + e, 32 + e, 36 + e)); A('v_add_f32 v%d, v%d, v%d' % (40 + e, 40 + e, 44 + e))
        A('v_add_f32 v%d, v%d, v%d' % (28 + e, 32 + e, 40 + e))
    A('v_mul_f32 v28, 0x3acccccd, v28')
    A('v_mul_f32 v29, 0x3acccccd, v29')
    A('v_fma_f32 v29, -v28, v28, v29')
    A('v_max_f32 v29, 0, v29')
    A('v_add_f32 v29, 0x3727c5ac, v29')
    A('v_rsq_f32 v29, v29')
    A('v_fma_f32 v30, -v28, v31, v30')
    A('s_nop 0')
    A('v_mul_f32 v30, v30, v29')
    lr = A.lab('LCr')
    A('s_cmp_lg_u32 s%d, 0\ns_cbranch_scc1 %s' % (w, lr))
    A('v_lshlrev_b32 v14, 2, v16\nv_add_u32 v14, 0x%x, v14' % RS_OFF)
    A('s_mov_b64 exec, 0xff')
    A('global_store_dword v14, v30, s[18:19] sc1')
    A('s_mov_b64 exec, -1')
    A(lr + ':')
    fst(23)
    for k in range(5):
        for j in range(2):
            a0, a1 = HB + 4 * k + 2 * j, HB + 4 * k + 2 * j + 1
            A('v_sub_f32 v148, v%d, v28' % a0); A('v_sub_f32 v149, v%d, v28' % a1)
            A('v_mul_f32 v148, v148, v29'); A('v_mul_f32 v149, v149, v29')
            A('v_cvt_pk_bf16_f32 v%d, v148, v149' % (32 + 2 * k + j))
        A('buffer_store_dwordx2 %s, v17, s[36:39], 0 offen offset:%d sc1' % (vr(32 + 2 * k, 2), k * 256))
    fst(20)
    for k in range(5):
        for j in range(2):
            a0, a1 = HB + 4 * k + 2 * j, HB + 4 * k + 2 * j + 1
            A('v_lshlrev_b32 v148, 16, v%d' % (32 + 2 * k + j)); A('v_and_b32 v149, 0xffff0000, v%d' % (32 + 2 * k + j))
            A('v_add_f32 v148, v148, v%d' % a0); A('v_add_f32 v149, v149, v%d' % a1)
            A('v_cvt_pk_bf16_f32 v%d, v148, v149' % (48 + 2 * k + j))
        A('buffer_store_dwordx2 %s, v17, s[32:35], 0 offen offset:%d sc1' % (vr(48 + 2 * k, 2), k * 256))
    fst(21)
    if ops:
        A('s_lshl_b32 s60, s2, 10\ns_lshl_b32 s61, s%d, 8\ns_add_u32 s60, s60, s61\ns_add_u32 s60, s60, 0x%x' % (S_W, G.TS_OFF + (4 << 20)))
        A('v_lshlrev_b32 v125, 2, v1\nv_add_u32 v125, s60, v125\nglobal_store_dword v125, v126, s[18:19]')

def ffn(A):
    w = S_W
    A('s_cmp_ge_u32 s2, %d\ns_cbranch_scc1 LA_end2' % (NWG_D + NWG_DN))
    A('s_load_dwordx2 s[10:11], s[0:1], 80')
    A('s_waitcnt lgkmcnt(0)')
    ffn_wd(A)
    A('s_load_dwordx2 s[10:11], s[0:1], 88')
    A('s_mov_b32 s60, 0x%x' % HN_OFF); srd(A, 36, 18, 19, 's60', 2048 * 1280)
    A('s_mov_b32 s60, 0x%x' % H_OFF); srd(A, 24, 18, 19, 's60', 2048 * 1280)
    A('s_waitcnt lgkmcnt(0)')
    srd(A, 28, 10, 11, None, 2048 * 1280)
    A('v_lshlrev_b32 v3, 5, v0\nv_add_u32 v3, 0x%x, v3' % RS_OFF)
    A('v_lshrrev_b32 v12, 5, v1\nv_lshlrev_b32 v12, 3, v12\nv_lshrrev_b32 v13, 2, v1\nv_and_b32 v13, 3, v13\nv_add_u32 v12, v12, v13')
    A('v_lshlrev_b32 v14, 6, v12')
    A('v_lshrrev_b32 v13, 4, v1\nv_and_b32 v13, 1, v13\nv_lshlrev_b32 v13, 5, v13\nv_and_b32 v15, 3, v1\nv_lshlrev_b32 v15, 3, v15\nv_add_u32 v13, v13, v15')
    A('v_add_u32 v14, v14, v13')
    if G.OPT.get('dbgw'): stamp(A)
    A('s_waitcnt vmcnt(0)\ns_barrier')
    if G.OPT.get('dbgw'): stamp(A)
    ldn = A.lab('Ldnw'); lj = A.lab('Ldnj')
    A('s_cmp_ge_u32 s2, %d\ns_cbranch_scc1 %s' % (NWG_D, ldn))
    A('s_mul_i32 s60, s%d, 10240\ns_add_u32 s60, s60, 81920\nv_add_u32 v15, s60, v14' % w)
    for i in range(10):
        for mat in range(2):
            for u in range(2):
                A('ds_read_b64_tr_b16 %s, v15 offset:%d' % (ar(i * 8 + mat * 4 + u * 2, 2), mat * 40960 + i * 1024 + u * 256))
        if i % 3 == 2: A('s_waitcnt lgkmcnt(0)')
    A('s_branch ' + lj)
    A(ldn + ':')
    A('s_mul_i32 s60, s%d, %d\ns_add_u32 s60, s60, %d\nv_add_u32 v15, s60, v14' % (w, 27 * 1024, WDB))
    for i in range(27):
        for u in range(2):
            A('ds_read_b64_tr_b16 %s, v15 offset:%d' % (ar(i * 4 + u * 2, 2), i * 1024 + u * 256))
        if i % 6 == 5: A('s_waitcnt lgkmcnt(0)')
    A(lj + ':')
    l0 = A.lab('Lrp'); l1 = A.lab('Lrd'); lA = A.lab('LrA'); lB = A.lab('LrB')
    A('s_mov_b32 s61, 0')
    A('v_mov_b32 v44, 0x%x' % SENT)
    def rload(b):
        A('global_load_dwordx4 %s, v3, s[18:19] sc1' % vr(b, 4))
        A('global_load_dwordx4 %s, v3, s[18:19] offset:16 sc1' % vr(b + 4, 4))
    def rcheck(b, lab):
        A('v_cmp_eq_u32 vcc, v%d, v44' % b)
        for e in range(1, 8):
            A('v_cmp_eq_u32 s[62:63], v%d, v44' % (b + e))
            A('s_or_b64 vcc, vcc, s[62:63]')
        A('s_cmp_eq_u64 vcc, 0')
        A('s_cbranch_scc1 ' + lab)
    rload(200); A('s_sleep 6'); rload(208)
    A(l0 + ':')
    A('s_waitcnt vmcnt(2)'); rcheck(200, lA); rload(200)
    A('s_waitcnt vmcnt(2)'); rcheck(208, lB); rload(208)
    A('s_add_u32 s61, s61, 1'); A('s_cmp_lt_u32 s61, 0x20000'); A('s_cbranch_scc1 ' + l0)
    A(lB + ':')
    for e in range(8): A('v_mov_b32 v%d, v%d' % (32 + e, 208 + e))
    A('s_branch ' + l1)
    A(lA + ':')
    for e in range(8): A('v_mov_b32 v%d, v%d' % (32 + e, 200 + e))
    A(l1 + ':')
    stamp(A)
    A('v_lshlrev_b32 v7, 3, v0')
    A('v_sub_u32 v7, 2047, v7')
    A('v_bfrev_b32 v45, 1')
    for e in range(8):
        x = 32 + e
        A('v_ashrrev_i32 v46, 31, v%d' % x)
        A('v_or_b32 v46, v46, v45')
        A('v_xor_b32 v%d, v%d, v46' % (x, x))
        A('v_and_b32 v%d, 0xfffff800, v%d' % (x, x))
        A('v_subrev_u32 v46, %d, v7' % e)
        A('v_or_b32 v%d, v%d, v46' % (x, x))
    A('v_max_u32 v40, v32, v33\nv_min_u32 v41, v32, v33')
    for e in range(2, 8):
        A('v_min_u32 v46, v40, v%d' % (32 + e))
        A('v_max_u32 v40, v40, v%d' % (32 + e))
        A('v_max_u32 v41, v41, v46')
    def merge(a1, a2, b1, b2):
        A('v_min_u32 v46, v%d, v%d' % (a1, b1))
        A('v_max_u32 v%d, v%d, v%d' % (a1, a1, b1))
        A('v_max_u32 v%d, v%d, v%d' % (a2, a2, b2))
        A('v_max_u32 v%d, v%d, v46' % (a2, a2))
    for sh in (1, 2, 4, 8):
        A('s_nop 1')
        A('v_mov_b32_dpp v42, v40 row_ror:%d row_mask:0xf bank_mask:0xf' % sh)
        A('v_mov_b32_dpp v43, v41 row_ror:%d row_mask:0xf bank_mask:0xf' % sh)
        merge(40, 41, 42, 43)
    A('ds_swizzle_b32 v42, v40 offset:0x401F')
    A('ds_swizzle_b32 v43, v41 offset:0x401F')
    A('s_waitcnt lgkmcnt(0)')
    merge(40, 41, 42, 43)
    A('v_mov_b32 v42, v40\nv_mov_b32 v43, v41\nv_mov_b32 v47, v40\nv_mov_b32 v48, v41')
    A('s_nop 1')
    A('v_permlane32_swap_b32 v47, v42\nv_permlane32_swap_b32 v48, v43')
    A('s_nop 1')
    A('v_mov_b32 v40, v47\nv_mov_b32 v41, v48')
    merge(40, 41, 42, 43)
    RED = 1024
    A('s_lshl_b32 s60, s%d, 3\ns_add_u32 s60, s60, %d\nv_mov_b32 v8, s60' % (w, RED))
    A('ds_write_b64 v8, v[40:41]')
    A('s_waitcnt lgkmcnt(0)\ns_barrier')
    A('v_mov_b32 v8, %d' % RED)
    A('ds_read_b128 v[40:43], v8')
    A('ds_read_b128 v[48:51], v8 offset:16')
    A('s_waitcnt lgkmcnt(0)')
    merge(40, 41, 42, 43); merge(48, 49, 50, 51); merge(40, 41, 48, 49)
    A('v_and_b32 v42, 2047, v40\nv_sub_u32 v42, 2047, v42')
    A('v_and_b32 v43, 2047, v41\nv_sub_u32 v43, 2047, v43')
    stamp(A)
    A('s_cmp_ge_u32 s2, %d\ns_cbranch_scc1 LA_down' % NWG_D)
    A('v_and_b32 v9, 1, v1')
    A('v_cmp_eq_u32 vcc, 1, v9')
    A('s_nop 1')
    A('v_cndmask_b32 v10, v42, v43, vcc')
    A('s_movk_i32 s60, 1280\nv_mul_lo_u32 v10, v10, s60')
    A('v_lshrrev_b32 v11, 5, v1\nv_lshlrev_b32 v11, 4, v11\nv_add_u32 v10, v10, v11')
    A('s_mul_i32 s60, s%d, 320' % w)
    RED2 = 1024 + 256
    A('v_and_b32 v16, 1, v1\nv_lshlrev_b32 v16, 7, v16\nv_lshrrev_b32 v17, 5, v1\nv_lshlrev_b32 v17, 4, v17\nv_add_u32 v16, v16, v17')
    A('s_lshl_b32 s61, s%d, 9\ns_add_u32 s61, s61, %d\nv_add_u32 v16, s61, v16' % (w, RED2))
    lx0 = A.lab('Lxp'); lx1 = A.lab('Lxd')
    A('s_mov_b32 s61, 0')
    A(lx0 + ':')
    for i in range(10):
        A('buffer_load_dwordx4 %s, v10, s[36:39], s60 offen offset:%d sc1' % (vr(64 + i * 4, 4), i * 32))
    A('s_waitcnt vmcnt(0)')
    A('v_max3_u32 v46, v64, v65, v66')
    for i in range(67, 103, 2):
        A('v_max3_u32 v46, v46, v%d, v%d' % (i, i + 1))
    A('v_max_u32 v46, v46, v103')
    A('v_cmp_eq_u32 vcc, -1, v46')
    A('s_nop 1')
    A('s_cmp_eq_u64 vcc, 0')
    A('s_cbranch_scc1 ' + lx1)
    A('s_add_u32 s61, s61, 1'); A('s_cmp_lt_u32 s61, 0x40000'); A('s_cbranch_scc1 ' + lx0)
    A(lx1 + ':')
    for i in range(10):
        for mat in range(2):
            acc = vr(112 + mat * 16, 16)
            A('%s %s, %s, %s, %s' % (MFMA, acc, ar(i * 8 + mat * 4, 4), vr(64 + i * 4, 4), '0' if i == 0 else acc))
    A('s_nop 15')
    A('s_mov_b32 exec_lo, 3\ns_mov_b32 exec_hi, 3')
    for mat in range(2):
        for a_ in range(4):
            A('ds_write_b128 v16, %s offset:%d' % (vr(112 + mat * 16 + a_ * 4, 4), mat * 256 + a_ * 32))
    A('s_mov_b64 exec, -1')
    A('s_waitcnt lgkmcnt(0)\ns_barrier')
    lg = A.lab('Lgu')
    A('s_cmp_lg_u32 s%d, 0\ns_cbranch_scc1 LA_end2' % w)
    A('v_lshrrev_b32 v16, 5, v1\nv_lshlrev_b32 v16, 7, v16\nv_and_b32 v17, 31, v1\nv_lshlrev_b32 v17, 2, v17\nv_add_u32 v16, v16, v17\nv_add_u32 v16, %d, v16' % RED2)
    for ww in range(4):
        A('ds_read_b32 v%d, v16 offset:%d' % (20 + ww, ww * 512))
        A('ds_read_b32 v%d, v16 offset:%d' % (24 + ww, ww * 512 + 256))
    A('v_lshrrev_b32 v16, 5, v1\nv_mul_u32_u24 v16, 3456, v16\nv_and_b32 v17, 31, v1\nv_lshlrev_b32 v17, 1, v17\nv_add_u32 v16, v16, v17')
    A('s_lshl_b32 s60, s2, 6\ns_add_u32 s60, s60, 0x%x\nv_add_u32 v16, s60, v16' % ACT_OFF)
    A('s_waitcnt lgkmcnt(0)')
    A('v_add_f32 v20, v20, v21\nv_add_f32 v22, v22, v23\nv_add_f32 v20, v20, v22')
    A('v_add_f32 v24, v24, v25\nv_add_f32 v26, v26, v27\nv_add_f32 v24, v24, v26')
    rnd_bf16(A, 20, 28); rnd_bf16(A, 24, 28)
    A('v_mul_f32 v21, 0xbfb8aa3b, v20\nv_exp_f32 v21, v21\ns_nop 0\nv_add_f32 v21, 1.0, v21\nv_rcp_f32 v21, v21\ns_nop 0\nv_mul_f32 v20, v20, v21')
    rnd_bf16(A, 20, 28)
    A('v_mul_f32 v20, v20, v24')
    A('s_nop 1')
    A('v_mov_b32_dpp v21, v20 quad_perm:[1,0,3,2] row_mask:0xf bank_mask:0xf')
    A('v_cvt_pk_bf16_f32 v20, v20, v21')
    A('s_mov_b32 exec_lo, 0x55555555\ns_mov_b32 exec_hi, 0x55555555')
    A('global_store_dword v16, v20, s[18:19] sc1')
    A('s_branch LA_end2')
    A('LA_down:')
    A('v_cmp_le_u32 vcc, 32, v1\ns_nop 1')
    A('v_cndmask_b32 v4, v42, v43, vcc')
    A('s_sub_u32 s60, s2, %d\ns_lshl_b32 s60, s60, 6' % NWG_D)
    A('s_movk_i32 s62, 1280\nv_mul_lo_u32 v9, v4, s62\nv_and_b32 v7, 31, v1\nv_lshlrev_b32 v7, 1, v7\nv_add_u32 v9, v9, v7\nv_add_u32 v9, s60, v9')
    A('buffer_load_ushort v24, v9, s[36:39], 0 offen sc1')
    A('buffer_load_ushort v25, v9, s[24:27], 0 offen sc1')
    A('v_lshlrev_b32 v5, 2, v4\nv_add_u32 v5, 0x%x, v5' % RS_OFF)
    A('global_load_dword v5, v5, s[18:19] sc1')
    A('v_and_b32 v10, 1, v1\nv_mul_u32_u24 v10, 3456, v10\nv_lshrrev_b32 v11, 5, v1\nv_lshlrev_b32 v11, 4, v11\nv_add_u32 v10, v10, v11')
    A('s_mul_i32 s60, s%d, 864\ns_add_u32 s60, s60, 0x%x\nv_add_u32 v10, s60, v10' % (w, ACT_OFF))
    l0 = A.lab('Lap'); l1 = A.lab('Lad')
    A('s_mov_b32 s61, 0')
    A(l0 + ':')
    for i in range(27):
        A('global_load_dwordx4 %s, v10, s[18:19] offset:%d sc1' % (vr(64 + i * 4, 4), i * 32))
    A('s_waitcnt vmcnt(0)')
    A('v_max3_u32 v46, v64, v65, v66')
    for i in range(67, 171, 2):
        A('v_max3_u32 v46, v46, v%d, v%d' % (i, i + 1))
    A('v_max_u32 v46, v46, v171')
    A('v_cmp_eq_u32 vcc, -1, v46')
    A('s_nop 1')
    A('s_cmp_eq_u64 vcc, 0')
    A('s_cbranch_scc1 ' + l1)
    A('s_add_u32 s61, s61, 1'); A('s_cmp_lt_u32 s61, 0x40000'); A('s_cbranch_scc1 ' + l0)
    A(l1 + ':')
    stamp(A)
    acc = vr(176, 16)
    for i in range(27):
        A('%s %s, %s, %s, %s' % (MFMA, acc, vr(64 + i * 4, 4), ar(i * 4, 4), '0' if i == 0 else acc))
    rnd_bf16(A, 5, 10)
    A('v_mul_f32 v5, 0xbfb8aa3b, v5\nv_exp_f32 v5, v5\ns_nop 0\nv_add_f32 v5, 1.0, v5\nv_rcp_f32 v5, v5\ns_nop 0')
    rnd_bf16(A, 5, 10)
    RED3 = 2048
    A('v_lshlrev_b32 v16, 2, v1\ns_lshl_b32 s60, s%d, 8\ns_add_u32 s60, s60, %d\nv_add_u32 v16, s60, v16' % (w, RED3))
    A('s_nop 15')
    A('s_mov_b32 exec_hi, 0')
    A('ds_write_b32 v16, v176')
    A('ds_write_b32 v16, v177 offset:128')
    A('s_mov_b64 exec, -1')
    A('s_waitcnt lgkmcnt(0)\ns_barrier')
    A('s_cmp_lg_u32 s%d, 0\ns_cbranch_scc1 LA_end2' % w)
    A('v_lshlrev_b32 v16, 2, v1\nv_add_u32 v16, %d, v16' % RED3)
    for ww in range(4):
        A('ds_read_b32 v%d, v16 offset:%d' % (20 + ww, ww * 256))
    lh0 = A.lab('Lhp'); lh1 = A.lab('Lhd')
    A('s_mov_b32 s61, 0')
    A('v_mov_b32 v11, 0xffff')
    A(lh0 + ':')
    A('v_cmp_eq_u32 vcc, v24, v11')
    A('v_cmp_eq_u32 s[62:63], v25, v11')
    A('s_nop 1')
    A('s_or_b64 vcc, vcc, s[62:63]')
    A('s_cmp_eq_u64 vcc, 0')
    A('s_cbranch_scc1 ' + lh1)
    A('buffer_load_ushort v24, v9, s[36:39], 0 offen sc1')
    A('buffer_load_ushort v25, v9, s[24:27], 0 offen sc1')
    A('s_waitcnt vmcnt(0)')
    A('s_add_u32 s61, s61, 1'); A('s_cmp_lt_u32 s61, 0x40000'); A('s_cbranch_scc1 ' + lh0)
    A(lh1 + ':')
    A('s_waitcnt lgkmcnt(0)')
    A('v_add_f32 v20, v20, v21\nv_add_f32 v22, v22, v23\nv_add_f32 v20, v20, v22')
    rnd_bf16(A, 20, 10)
    if G.OPT.get('perturb'): A('v_mul_f32 v20, 0x%x, v20' % G.OPT['perturb'])
    A('v_mul_f32 v20, v20, v5')
    rnd_bf16(A, 20, 10)
    A('v_lshlrev_b32 v24, 16, v24\nv_lshlrev_b32 v25, 16, v25')
    A('v_add_f32 v20, v20, v24')
    rnd_bf16(A, 20, 10)
    A('v_add_f32 v20, v20, v25')
    A('v_cvt_pk_bf16_f32 v20, v20, v20')
    A('buffer_store_short v20, v9, s[28:31], 0 offen sc1')
    A('LA_end2:')
    A('s_mov_b64 exec, -1')

def tail(A):
    if G.OPT.get('op2', 0): outproj2(A)
    else: outproj(A)
    stamp(A)
    ln2(A)
    ffn(A)
```

```python
from asmlib import *
import gen as G
from gen import stamp, stamp_flush, stamp_reset, MFMA, NAME, srd, spin_wait, PART_OFF, CTX_OFF, HN_OFF, H_OFF, RS_OFF, Y_OFF

KB, KC, KD = 'oproj_kernel', 'lnr_kernel', 'ffn_kernel'

def launches(OPT):
    return [(KB, 256, 256, 81920), (KC, 256, 256, 1024), (KD, 54, 256, 126976)]
def kernels(OPT):
    return [(KB, 192, 144), (KC, 128, 128), (KD, 208, 144)]

def head(A, K):
    A('.globl %s\n.p2align 8\n.type %s,@function\n%s:' % (K, K, K))

def kernel_b(A, OPT):
    head(A, KB)
    A('s_cmp_ge_u32 s2, 256\ns_cbranch_scc1 LB_end')
    A('s_load_dwordx2 s[8:9], s[0:1], 40')
    A('s_load_dwordx2 s[18:19], s[0:1], 104')
    A('v_and_b32 v1, 63, v0\nv_lshrrev_b32 v2, 6, v0')
    A('s_and_b32 s20, s2, 3')
    A('s_bfe_u32 s21, s2, 0x10002')
    A('s_lshr_b32 s22, s2, 3')
    A('s_and_b32 s23, s22, 7')
    A('s_lshl_b32 s21, s21, 3')
    A('s_add_u32 s21, s21, s23')
    A('s_lshr_b32 s22, s22, 3')
    A('v_readfirstlane_b32 s23, v2')
    A('s_waitcnt lgkmcnt(0)')
    stamp_reset(80, 1); stamp(A)
    A('s_mul_i32 s60, s20, %d' % (1024 * 1280))
    A('s_mul_i32 s61, s22, 320')
    A('s_add_u32 s60, s60, s61')
    srd(A, 24, 8, 9, 's60', 0)
    A('s_sub_u32 s26, %d, s60' % (4096 * 1280))
    A('s_lshl_b32 s60, s21, 2\ns_add_u32 s60, s60, s23\ns_lshl_b32 s60, s60, 8')
    A('s_lshl_b32 s61, s20, 6\ns_add_u32 s60, s60, s61\ns_lshl_b32 s60, s60, 10')
    A('s_add_u32 s60, s60, 0x%x' % CTX_OFF)
    srd(A, 28, 18, 19, 's60', 65536)
    A('s_lshl_b32 s60, s20, 6\ns_lshl_b32 s61, s21, 2\ns_add_u32 s60, s60, s61\ns_add_u32 s60, s60, s23')
    A('s_mul_i32 s60, s60, 20\ns_mul_i32 s61, s22, 5\ns_add_u32 s60, s60, s61\ns_lshl_b32 s60, s60, 12')
    A('s_add_u32 s60, s60, 0x%x' % PART_OFF)
    srd(A, 32, 18, 19, 's60', 20480)
    A('v_lshlrev_b32 v3, 4, v1')
    A('s_mul_i32 s60, s23, 320')
    A('s_movk_i32 s61, 3277')
    for i in range(5):
        A('v_add_u32 v10, s60, v1')
        A('v_add_u32 v10, %d, v10' % (i * 64))
        A('v_mul_lo_u32 v11, v10, s61')
        A('v_lshrrev_b32 v11, 16, v11')
        A('v_mul_u32_u24 v12, 20, v11')
        A('v_sub_u32 v12, v10, v12')
        A('v_mul_u32_u24 v11, 1280, v11')
        A('v_lshlrev_b32 v12, 4, v12')
        A('v_add_u32 v11, v11, v12')
        if i < 4 and i > 0: A('v_subrev_u32 v11, %d, v11' % (i * 1024))
        A('v_mov_b32 v%d, v11' % (4 + i))
    A('v_lshrrev_b32 v10, 5, v1\nv_lshlrev_b32 v10, 2, v10')
    A('v_lshrrev_b32 v11, 2, v1\nv_and_b32 v11, 3, v11\nv_add_u32 v10, v10, v11')
    A('v_mul_u32_u24 v10, 320, v10')
    A('v_lshrrev_b32 v11, 4, v1\nv_and_b32 v11, 1, v11\nv_lshlrev_b32 v11, 5, v11\nv_add_u32 v10, v10, v11')
    A('v_and_b32 v11, 3, v1\nv_lshlrev_b32 v11, 3, v11\nv_add_u32 v14, v10, v11')
    A('v_add_u32 v15, 40960, v14')
    A('s_mul_i32 s62, s23, 5120')
    NST = 16
    def dma(st):
        pre = ['s_add_u32 m0, s62, %d' % ((st & 3) * 20480), 's_mov_b32 s63, %d' % (st * 64 * 1280)]
        ins = ['buffer_load_dwordx4 v%d, s[24:27], s63 offen offset:%d lds' % (4 + i, i * 1024) for i in range(4)]
        ins.append('s_add_u32 m0, s62, %d\ns_nop 0\nbuffer_load_dwordx4 v8, s[24:27], s63 offen lds' % ((st & 3) * 20480 + 4096))
        return pre, ins
    def cload(ks):
        slot = ks % 12
        return ('buffer_load_dwordx4 %s, v3, s[28:31], s%d offen offset:%d' % (vr(16 + slot * 4, 4), 64 + ((ks // 4) & 3), (ks % 4) * 1024), ('X', ks))
    def csoff(grp): return 's_mov_b32 s%d, %d' % (64 + (grp & 3), grp * 4096)
    def wreads(ks):
        st, sidx = ks // 4, ks % 4
        b = (ks & 1) * 20
        out = []
        for mt in range(5):
            for u in range(2):
                off = (st & 3) * 20480 + (16 * sidx + 8 * u) * 320 + mt * 64
                base = 14 if off < 40960 else 15
                out.append(('ds_read_b64_tr_b16 %s, v%d offset:%d' % (ar(b + mt * 4 + u * 2, 2), base, off % 40960 if base == 15 else off), ('W', ks, mt, u)))
        return out
    vq = []
    for st in range(3):
        pre, ins = dma(st); A('\n'.join(pre + ins)); vq += [('D', st)] * 5
    PF = 11
    for g in range(3): A(csoff(g))
    for ks in range(PF):
        t, tok = cload(ks); A(t); vq.append(tok)
    A('s_waitcnt vmcnt(%d)' % (len(vq) - 5)); vq = vq[5:]
    A('s_barrier')
    stamp(A)
    q = []
    for t, tok in wreads(0):
        A(t); q.append(tok)
    ACC = 64
    for ks in range(64):
        st, sidx = ks // 4, ks % 4
        b = (ks & 1) * 20
        sp = []
        for mt in range(5):
            r = ACC + mt * 16
            c = '0' if ks == 0 else vr(r, 16)
            sp.append(dict(t='%s %s, %s, %s, %s' % (MFMA, vr(r, 16), ar(b + mt * 4, 4), vr(16 + (ks % 12) * 4, 4), c),
                           need=[('W', ks, mt, 0), ('W', ks, mt, 1)], needvm=[('X', ks)]))
        fl = []
        if sidx == 3 and ks < 63:
            w = 'lgkmcnt(0)'
            if ('D', st + 1) in vq:
                mv = len(vq) - 1 - vq[::-1].index(('D', st + 1))
                w = 'vmcnt(%d) ' % (len(vq) - 1 - mv) + w
                vq = vq[mv + 1:]
            A('s_waitcnt ' + w); q = []
            A('s_barrier')
            if st + 3 < NST:
                pre, ins = dma(st + 3)
                for i, t in enumerate(ins):
                    fl.append(dict(t=('\n'.join(pre) + '\n' + t) if i == 0 else t, pos=0.5 + 0.9 * i, cost=18, vm=('D', st + 3)))
        if ks + 1 < 64:
            for i, (t, tok) in enumerate(wreads(ks + 1)):
                fl.append(dict(t=t, pos=0.1 + i * 0.45, cost=6, ds=tok))
        if ks + PF < 64:
            k2 = ks + PF
            t, tok = cload(k2)
            if k2 % 4 == 0: t = csoff(k2 // 4) + '\n' + t
            fl.append(dict(t=t, pos=2.5, cost=16, vm=tok))
        q, vq = interleave(A, sp, fl, q, vm_state=vq)
    A('s_nop 15')
    stamp(A)
    for mt in range(5):
        A('s_mov_b32 s60, %d' % (mt * 4096))
        for a_ in range(4):
            A('buffer_store_dwordx4 %s, v3, s[32:35], s60 offen offset:%d' % (vr(ACC + mt * 16 + a_ * 4, 4), a_ * 1024))
    if OPT['ts']: A('s_waitcnt vmcnt(0)')
    stamp(A); stamp_flush(A, 23)
    A('LB_end:\ns_endpgm')

def rnd_bf16(A, vx, vt):
    A('v_cvt_pk_bf16_f32 v%d, v%d, v%d' % (vt, vx, vx))
    A('v_lshlrev_b32 v%d, 16, v%d' % (vx, vt))

def red8(A, vx, vt):
    A('s_nop 1')
    A('v_add_f32_dpp v%d, v%d, v%d row_ror:8 row_mask:0xf bank_mask:0xf' % (vx, vx, vx))
    A('ds_swizzle_b32 v%d, v%d offset:0x401F' % (vt, vx))
    A('s_waitcnt lgkmcnt(0)')
    A('v_add_f32 v%d, v%d, v%d' % (vx, vx, vt))
    A('v_mov_b32 v%d, v%d' % (vt, vx))
    A('s_nop 1')
    A('v_permlane32_swap_b32 v%d, v%d' % (vx, vt))
    A('s_nop 1')
    A('v_add_f32 v%d, v%d, v%d' % (vx, vx, vt))

def xwave_sum(A, vx, slot):
    A('ds_write_b32 v9, v%d offset:%d' % (vx, slot * 128))
    A('s_waitcnt lgkmcnt(0)')
    A('s_barrier')
    A('ds_read_b32 v10, v8 offset:%d' % (slot * 128))
    A('ds_read_b32 v11, v8 offset:%d' % (slot * 128 + 32))
    A('ds_read_b32 v12, v8 offset:%d' % (slot * 128 + 64))
    A('ds_read_b32 v13, v8 offset:%d' % (slot * 128 + 96))
    A('s_waitcnt lgkmcnt(0)')
    A('v_add_f32 v10, v10, v11\nv_add_f32 v12, v12, v13\nv_add_f32 v%d, v10, v12' % vx)

def kernel_c(A, OPT):
    head(A, KC)
    A('s_cmp_ge_u32 s2, 256\ns_cbranch_scc1 LC_end')
    A('s_load_dwordx2 s[4:5], s[0:1], 0')
    A('s_load_dwordx2 s[6:7], s[0:1], 56')
    A('s_load_dwordx2 s[8:9], s[0:1], 88')
    A('s_load_dwordx2 s[18:19], s[0:1], 104')
    A('v_lshrrev_b32 v2, 6, v0\nv_and_b32 v1, 63, v0')
    A('v_readfirstlane_b32 s23, v2')
    A('s_lshr_b32 s20, s2, 2')
    A('s_and_b32 s21, s2, 3')
    A('s_waitcnt lgkmcnt(0)')
    stamp_reset(80, 2); stamp(A)
    A('s_mov_b32 s60, 0x%x' % PART_OFF)
    srd(A, 24, 18, 19, 's60', 4 * 64 * 20 * 4096)
    srd(A, 28, 4, 5, None, 2048 * 1280)
    srd(A, 32, 8, 9, None, 2048 * 1280)
    A('s_mov_b32 s60, 0x%x' % HN_OFF); srd(A, 36, 18, 19, 's60', 2048 * 1280)
    A('s_mov_b32 s60, 0x%x' % H_OFF); srd(A, 40, 18, 19, 's60', 2048 * 1280)
    srd(A, 44, 6, 7, None, 1280)
    A('v_and_b32 v3, 7, v1')
    A('v_lshrrev_b32 v4, 3, v1')
    A('v_lshrrev_b32 v5, 1, v4')
    A('v_and_b32 v6, 1, v4')
    A('v_lshlrev_b32 v7, 5, v6\nv_add_u32 v7, v7, v3')
    A('s_lshl_b32 s60, s21, 3\nv_add_u32 v7, s60, v7\nv_lshlrev_b32 v7, 4, v7')
    A('v_lshlrev_b32 v14, 10, v5\nv_add_u32 v7, v7, v14')
    A('s_mul_i32 s61, s20, 20\ns_add_u32 s61, s61, s23\ns_lshl_b32 s61, s61, 12')
    for k in range(5):
        for c in range(4):
            A('s_add_u32 s62, s61, %d' % (c * 64 * 20 * 4096 + k * 4 * 4096))
            A('buffer_load_dwordx4 %s, v7, s[24:27], s62 offen' % vr(32 + (k * 4 + c) * 4, 4))
    A('v_lshlrev_b32 v15, 3, v5\nv_lshlrev_b32 v16, 2, v6\nv_add_u32 v15, v15, v16')
    A('s_lshl_b32 s60, s23, 5\nv_add_u32 v15, s60, v15\nv_lshlrev_b32 v15, 1, v15')
    A('s_lshl_b32 s60, s2, 3\nv_add_u32 v16, s60, v3')
    A('s_movk_i32 s60, 1280\nv_mul_lo_u32 v17, v16, s60\nv_add_u32 v17, v17, v15')
    for k in range(5):
        A('buffer_load_dwordx2 %s, v17, s[28:31], 0 offen offset:%d' % (vr(112 + 2 * k, 2), k * 256))
    for k in range(5):
        A('buffer_load_dwordx2 %s, v15, s[44:47], 0 offen offset:%d' % (vr(122 - 0 + 0 * k, 2) if False else vr(18 + 2 * k, 2), k * 256))
    A('v_lshlrev_b32 v8, 2, v3')
    A('s_lshl_b32 s60, s23, 5\nv_add_u32 v9, s60, v8')
    lz = A.lab('LCz')
    A('s_cmp_ge_u32 s2, 40\ns_cbranch_scc1 ' + lz)
    A('s_cmp_lg_u32 s23, 0\ns_cbranch_scc1 ' + lz)
    A('v_mov_b32 v28, 0\nv_mov_b32 v29, 0\nv_mov_b32 v30, 0\nv_mov_b32 v31, 0')
    A('s_lshl_b32 s60, s2, 10\ns_add_u32 s60, s60, 0x%x' % Y_OFF)
    A('v_lshlrev_b32 v14, 4, v1\nv_add_u32 v14, s60, v14')
    A('global_store_dwordx4 v14, v[28:31], s[18:19]')
    A(lz + ':')
    A('s_waitcnt vmcnt(0)')
    stamp(A)
    for k in range(5):
        b0 = 32 + k * 16
        for b in range(4):
            A('v_add_f32 v%d, v%d, v%d' % (b0 + b, b0 + b, b0 + 4 + b))
            A('v_add_f32 v%d, v%d, v%d' % (b0 + 8 + b, b0 + 8 + b, b0 + 12 + b))
            A('v_add_f32 v%d, v%d, v%d' % (b0 + b, b0 + b, b0 + 8 + b))
        A('v_cvt_pk_bf16_f32 v%d, v%d, v%d' % (b0 + 4, b0, b0 + 1))
        A('v_cvt_pk_bf16_f32 v%d, v%d, v%d' % (b0 + 5, b0 + 2, b0 + 3))
        for j in range(2):
            A('v_lshlrev_b32 v%d, 16, v%d' % (b0 + 2 * j, b0 + 4 + j))
            A('v_and_b32 v%d, 0xffff0000, v%d' % (b0 + 2 * j + 1, b0 + 4 + j))
            A('v_lshlrev_b32 v%d, 16, v%d' % (b0 + 8, 112 + 2 * k + j))
            A('v_and_b32 v%d, 0xffff0000, v%d' % (b0 + 9, 112 + 2 * k + j))
            A('v_add_f32 v%d, v%d, v%d' % (b0 + 2 * j, b0 + 2 * j, b0 + 8))
            A('v_add_f32 v%d, v%d, v%d' % (b0 + 2 * j + 1, b0 + 2 * j + 1, b0 + 9))
        A('v_cvt_pk_bf16_f32 v%d, v%d, v%d' % (b0 + 4, b0, b0 + 1))
        A('v_cvt_pk_bf16_f32 v%d, v%d, v%d' % (b0 + 5, b0 + 2, b0 + 3))
        for j in range(2):
            A('v_lshlrev_b32 v%d, 16, v%d' % (b0 + 2 * j, b0 + 4 + j))
            A('v_and_b32 v%d, 0xffff0000, v%d' % (b0 + 2 * j + 1, b0 + 4 + j))
        A('buffer_store_dwordx2 %s, v17, s[40:43], 0 offen offset:%d' % (vr(b0 + 4, 2), k * 256))
    A('v_add_f32 v28, v32, v33')
    for k in range(5):
        for b in range(4):
            if k == 0 and b < 2: continue
            A('v_add_f32 v28, v28, v%d' % (32 + k * 16 + b))
    red8(A, 28, 29); xwave_sum(A, 28, 0)
    A('v_mul_f32 v28, 0x3acccccd, v28')
    A('v_mov_b32 v29, 0')
    for k in range(5):
        for b in range(4):
            r = 32 + k * 16 + b
            A('v_sub_f32 v%d, v%d, v28' % (r + 8, r))
            A('v_fmac_f32 v29, v%d, v%d' % (r + 8, r + 8))
    red8(A, 29, 30); xwave_sum(A, 29, 1)
    A('v_mov_b32 v30, 0x3727c5ac\nv_fmac_f32 v30, 0x3acccccd, v29\nv_rsq_f32 v30, v30\ns_nop 0')
    A('v_mov_b32 v31, 0')
    for k in range(5):
        b0 = 32 + k * 16
        for b in range(4):
            A('v_mul_f32 v%d, v%d, v30' % (b0 + 8 + b, b0 + 8 + b))
        A('v_cvt_pk_bf16_f32 v%d, v%d, v%d' % (b0 + 6, b0 + 8, b0 + 9))
        A('v_cvt_pk_bf16_f32 v%d, v%d, v%d' % (b0 + 7, b0 + 10, b0 + 11))
        for j in range(2):
            A('v_lshlrev_b32 v%d, 16, v%d' % (b0 + 8 + 2 * j, b0 + 6 + j))
            A('v_and_b32 v%d, 0xffff0000, v%d' % (b0 + 9 + 2 * j, b0 + 6 + j))
            A('v_lshlrev_b32 v%d, 16, v%d' % (b0 + 12, 18 + 2 * k + j))
            A('v_and_b32 v%d, 0xffff0000, v%d' % (b0 + 13, 18 + 2 * k + j))
            A('v_fmac_f32 v31, v%d, v%d' % (b0 + 8 + 2 * j, b0 + 12))
            A('v_fmac_f32 v31, v%d, v%d' % (b0 + 9 + 2 * j, b0 + 13))
        A('buffer_store_dwordx2 %s, v17, s[36:39], 0 offen offset:%d' % (vr(b0 + 6, 2), k * 256))
        for b in range(4):
            A('v_add_f32 v%d, v%d, v%d' % (b0 + 12 + b, b0 + b, b0 + 8 + b))
        A('v_cvt_pk_bf16_f32 v%d, v%d, v%d' % (b0 + 4, b0 + 12, b0 + 13))
        A('v_cvt_pk_bf16_f32 v%d, v%d, v%d' % (b0 + 5, b0 + 14, b0 + 15))
        A('buffer_store_dwordx2 %s, v17, s[32:35], 0 offen offset:%d' % (vr(b0 + 4, 2), k * 256))
    red8(A, 31, 30); xwave_sum(A, 31, 2)
    lr = A.lab('LCr')
    A('s_cmp_lg_u32 s23, 0\ns_cbranch_scc1 ' + lr)
    A('v_lshlrev_b32 v14, 2, v16\nv_add_u32 v14, 0x%x, v14' % RS_OFF)
    A('s_mov_b64 exec, 0xff')
    A('global_store_dword v14, v31, s[18:19]')
    A(lr + ':')
    if OPT['ts']: A('s_waitcnt vmcnt(0)')
    stamp(A); stamp_flush(A, 23)
    A('LC_end:\ns_endpgm')

NWG_D = 54
def top2_merge(A, v1, i1, v2, i2, w1, j1, w2, j2, t):
    def better(a_, ia, b_, ib, pair):
        A('v_cmp_gt_f32 %s, v%d, v%d' % (pair, a_, b_))
        A('v_cmp_eq_f32 s[92:93], v%d, v%d' % (a_, b_))
        A('v_cmp_lt_u32 s[94:95], v%d, v%d' % (ia, ib))
        A('s_nop 1')
        A('s_and_b64 s[92:93], s[92:93], s[94:95]')
        A('s_or_b64 %s, %s, s[92:93]' % (pair, pair))
    better(w1, j1, v1, i1, 's[88:89]')
    A('v_cndmask_b32 v%d, v%d, v%d, s[88:89]' % (t, w1, v1))
    A('v_cndmask_b32 v%d, v%d, v%d, s[88:89]' % (t + 1, j1, i1))
    A('v_cndmask_b32 v%d, v%d, v%d, s[88:89]' % (t + 2, v2, w2))
    A('v_cndmask_b32 v%d, v%d, v%d, s[88:89]' % (t + 3, i2, j2))
    A('v_cndmask_b32 v%d, v%d, v%d, s[88:89]' % (v1, v1, w1))
    A('v_cndmask_b32 v%d, v%d, v%d, s[88:89]' % (i1, i1, j1))
    better(t, t + 1, t + 2, t + 3, 's[90:91]')
    A('v_cndmask_b32 v%d, v%d, v%d, s[90:91]' % (v2, t + 2, t))
    A('v_cndmask_b32 v%d, v%d, v%d, s[90:91]' % (i2, t + 3, t + 1))

def kernel_d(A, OPT):
    head(A, KD)
    A('s_cmp_ge_u32 s2, %d\ns_cbranch_scc1 LD_end' % NWG_D)
    A('s_load_dwordx4 s[4:7], s[0:1], 64')
    A('s_load_dwordx2 s[8:9], s[0:1], 80')
    A('s_load_dwordx2 s[10:11], s[0:1], 88')
    A('s_load_dwordx4 s[16:19], s[0:1], 96')
    A('v_lshrrev_b32 v2, 6, v0\nv_and_b32 v1, 63, v0')
    A('v_readfirstlane_b32 s23, v2')
    A('s_waitcnt lgkmcnt(0)')
    stamp_reset(66, 3); stamp(A)
    A('v_lshlrev_b32 v3, 5, v0\nv_add_u32 v3, 0x%x, v3' % RS_OFF)
    A('global_load_dwordx4 v[32:35], v3, s[18:19]')
    A('global_load_dwordx4 v[36:39], v3, s[18:19] offset:16')
    A('s_lshl_b32 s60, s2, 6')
    srd(A, 24, 4, 5, 's60', 0); A('s_sub_u32 s26, %d, s60' % (640 * 3456))
    srd(A, 28, 6, 7, 's60', 0); A('s_sub_u32 s30, %d, s60' % (640 * 3456))
    A('s_mul_i32 s60, s2, 40960')
    srd(A, 32, 8, 9, 's60', 40960)
    A('s_mov_b32 s60, 0x%x' % HN_OFF); srd(A, 36, 18, 19, 's60', 2048 * 1280)
    A('s_mov_b32 s60, 0x%x' % H_OFF); srd(A, 40, 18, 19, 's60', 2048 * 1280)
    srd(A, 44, 10, 11, None, 2048 * 1280)
    A('v_lshrrev_b32 v4, 2, v1\nv_mul_u32_u24 v4, 3456, v4\nv_and_b32 v5, 3, v1\nv_lshlrev_b32 v5, 4, v5\nv_add_u32 v4, v4, v5')
    A('s_mul_i32 s62, s23, %d' % (10 * 16 * 3456))
    A('s_mul_i32 s63, s23, 10240')
    for mat, sd in ((0, 24), (1, 28)):
        for i in range(10):
            A('s_add_u32 m0, s63, %d' % (mat * 40960 + i * 1024))
            A('s_add_u32 s64, s62, %d' % (i * 16 * 3456))
            A('buffer_load_dwordx4 v4, s[%d:%d], s64 offen lds' % (sd, sd + 3))
    A('v_lshlrev_b32 v6, 4, v1')
    for i in range(10):
        A('s_add_u32 m0, s63, %d' % (81920 + i * 1024))
        A('s_add_u32 s64, s63, %d' % (i * 1024))
        A('buffer_load_dwordx4 v6, s[32:35], s64 offen lds')
    A('s_waitcnt vmcnt(30)')
    stamp(A)
    A('v_lshlrev_b32 v7, 3, v0')
    A('v_mov_b32 v40, v32\nv_mov_b32 v41, v7\nv_mov_b32 v42, 0xff800000\nv_mov_b32 v43, 0x7fffffff')
    for e in range(1, 8):
        A('v_add_u32 v44, %d, v7' % e)
        A('v_cmp_gt_f32 s[88:89], v%d, v40' % (32 + e))
        A('v_cmp_gt_f32 s[90:91], v%d, v42' % (32 + e))
        A('s_nop 1')
        A('v_cndmask_b32 v42, v42, v%d, s[90:91]' % (32 + e))
        A('v_cndmask_b32 v43, v43, v44, s[90:91]')
        A('v_cndmask_b32 v42, v42, v40, s[88:89]')
        A('v_cndmask_b32 v43, v43, v41, s[88:89]')
        A('v_cndmask_b32 v40, v40, v%d, s[88:89]' % (32 + e))
        A('v_cndmask_b32 v41, v41, v44, s[88:89]')
    for x in (1, 2, 4, 8, 16):
        off = (x << 10) | 0x1f
        for j in range(4):
            A('ds_swizzle_b32 v%d, v%d offset:0x%x' % (44 + j, 40 + j, off))
        A('s_waitcnt lgkmcnt(0)')
        top2_merge(A, 40, 41, 42, 43, 44, 45, 46, 47, 48)
    for j in range(4):
        A('v_mov_b32 v%d, v%d' % (44 + j, 40 + j))
        A('v_mov_b32 v%d, v%d' % (52 + j, 40 + j))
    A('s_nop 1')
    for j in range(4):
        A('v_permlane32_swap_b32 v%d, v%d' % (52 + j, 44 + j))
    A('s_nop 1')
    for j in range(4): A('v_mov_b32 v%d, v%d' % (40 + j, 52 + j))
    top2_merge(A, 40, 41, 42, 43, 44, 45, 46, 47, 48)
    RED = 122880
    A('s_lshl_b32 s60, s23, 4\ns_add_u32 s60, s60, %d\nv_mov_b32 v8, s60' % RED)
    A('ds_write_b128 v8, v[40:43]')
    A('s_waitcnt lgkmcnt(0)\ns_barrier')
    A('v_mov_b32 v8, %d' % RED)
    A('ds_read_b128 v[40:43], v8')
    A('ds_read_b128 v[44:47], v8 offset:16')
    A('ds_read_b128 v[56:59], v8 offset:32')
    A('ds_read_b128 v[60:63], v8 offset:48')
    A('s_waitcnt lgkmcnt(0)')
    top2_merge(A, 40, 41, 42, 43, 44, 45, 46, 47, 48)
    top2_merge(A, 56, 57, 58, 59, 60, 61, 62, 63, 48)
    top2_merge(A, 40, 41, 42, 43, 56, 57, 58, 59, 48)
    stamp(A)
    A('v_and_b32 v9, 1, v1')
    A('v_cmp_eq_u32 vcc, 1, v9')
    A('s_nop 1')
    A('v_cndmask_b32 v10, v41, v43, vcc')
    A('s_movk_i32 s60, 1280\nv_mul_lo_u32 v10, v10, s60')
    A('v_lshrrev_b32 v11, 5, v1\nv_lshlrev_b32 v11, 4, v11\nv_add_u32 v10, v10, v11')
    A('s_mul_i32 s60, s23, 320')
    for i in range(10):
        A('buffer_load_dwordx4 %s, v10, s[36:39], s60 offen offset:%d' % (vr(64 + i * 4, 4), i * 32))
    A('v_lshrrev_b32 v12, 5, v1\nv_lshlrev_b32 v12, 3, v12\nv_lshrrev_b32 v13, 2, v1\nv_and_b32 v13, 3, v13\nv_add_u32 v12, v12, v13')
    A('v_lshlrev_b32 v14, 6, v12')
    A('v_lshrrev_b32 v13, 4, v1\nv_and_b32 v13, 1, v13\nv_lshlrev_b32 v13, 5, v13\nv_and_b32 v15, 3, v1\nv_lshlrev_b32 v15, 3, v15\nv_add_u32 v13, v13, v15')
    A('v_add_u32 v14, v14, v13')
    A('s_mul_i32 s60, s23, 10240\nv_add_u32 v14, s60, v14')
    A('s_waitcnt vmcnt(0)')
    A('s_barrier')
    stamp(A)
    for i in range(10):
        for mat in range(2):
            for u in range(2):
                A('ds_read_b64_tr_b16 %s, v14 offset:%d' % (ar(mat * 4 + u * 2 + (i & 1) * 8, 2), mat * 40960 + i * 1024 + u * 256))
        A('s_waitcnt lgkmcnt(0)')
        for mat in range(2):
            r = 16 + 0
            acc = 'a[%d:%d]' % (32 + mat * 16, 47 + mat * 16)
            A('%s %s, %s, %s, %s' % (MFMA, acc, ar(mat * 4 + (i & 1) * 8, 4), vr(64 + i * 4, 4), '0' if i == 0 else acc))
    A('s_nop 15')
    RED2 = 122880 + 256
    for r in range(32): A('v_accvgpr_read_b32 v%d, a%d' % (64 + r, 32 + r))
    A('v_and_b32 v16, 1, v1\nv_lshlrev_b32 v16, 7, v16\nv_lshrrev_b32 v17, 5, v1\nv_lshlrev_b32 v17, 4, v17\nv_add_u32 v16, v16, v17')
    A('s_lshl_b32 s60, s23, 9\ns_add_u32 s60, s60, %d\nv_add_u32 v16, s60, v16' % RED2)
    A('s_mov_b32 exec_lo, 3\ns_mov_b32 exec_hi, 3')
    for mat in range(2):
        for a_ in range(4):
            A('ds_write_b128 v16, %s offset:%d' % (vr(64 + mat * 16 + a_ * 4, 4), mat * 256 + a_ * 32))
    A('s_mov_b64 exec, -1')
    A('s_waitcnt lgkmcnt(0)\ns_barrier')
    A('v_lshrrev_b32 v16, 5, v1\nv_lshlrev_b32 v16, 7, v16\nv_and_b32 v17, 31, v1\nv_lshlrev_b32 v17, 2, v17\nv_add_u32 v16, v16, v17\nv_add_u32 v16, %d, v16' % RED2)
    for w in range(4):
        A('ds_read_b32 v%d, v16 offset:%d' % (20 + w, w * 512))
        A('ds_read_b32 v%d, v16 offset:%d' % (24 + w, w * 512 + 256))
    A('s_waitcnt lgkmcnt(0)')
    A('v_add_f32 v20, v20, v21\nv_add_f32 v22, v22, v23\nv_add_f32 v20, v20, v22')
    A('v_add_f32 v24, v24, v25\nv_add_f32 v26, v26, v27\nv_add_f32 v24, v24, v26')
    rnd_bf16(A, 20, 28); rnd_bf16(A, 24, 28)
    A('v_mul_f32 v21, 0xbfb8aa3b, v20\nv_exp_f32 v21, v21\ns_nop 0\nv_add_f32 v21, 1.0, v21\nv_rcp_f32 v21, v21\ns_nop 0\nv_mul_f32 v20, v20, v21')
    rnd_bf16(A, 20, 28)
    A('v_mul_f32 v20, v20, v24')
    A('v_cvt_pk_bf16_f32 v20, v20, v20')
    ACT = RED2 + 2048
    A('v_lshrrev_b32 v16, 5, v1\nv_lshlrev_b32 v16, 6, v16\nv_and_b32 v17, 31, v1\nv_lshlrev_b32 v17, 1, v17\nv_add_u32 v16, v16, v17\nv_add_u32 v16, %d, v16' % ACT)
    lw = A.lab('LDa')
    A('s_cmp_lg_u32 s23, 0\ns_cbranch_scc1 ' + lw)
    A('ds_write_b16 v16, v20')
    A(lw + ':')
    A('s_waitcnt lgkmcnt(0)\ns_barrier')
    A('v_and_b32 v16, 1, v1\nv_lshlrev_b32 v16, 6, v16\nv_lshrrev_b32 v17, 5, v1\nv_lshlrev_b32 v17, 4, v17\nv_add_u32 v16, v16, v17\nv_add_u32 v16, %d, v16' % ACT)
    A('ds_read_b128 v[20:23], v16\nds_read_b128 v[24:27], v16 offset:32')
    A('v_mul_u32_u24 v17, 1280, v12\nv_add_u32 v17, v17, v13')
    A('s_mul_i32 s60, s23, 320\ns_add_u32 s60, s60, 81920\nv_add_u32 v17, s60, v17')
    A('s_and_b32 s60, s2, 7\ns_mul_i32 s60, s60, 5120\ns_mul_i32 s61, s23, 640\ns_add_u32 s60, s60, s61\ns_add_u32 s60, s60, 0x%x' % Y_OFF)
    A('v_lshlrev_b32 v18, 2, v1\nv_add_u32 v18, s60, v18')
    for mt in range(5):
        for ks in range(2):
            for u in range(2):
                A('ds_read_b64_tr_b16 %s, v17 offset:%d' % (ar(ks * 4 + u * 2, 2), (16 * ks + 4 * u) * 1280 + mt * 64))
        A('s_waitcnt lgkmcnt(0)')
        acc = vr(64 + mt * 16, 16)
        A('%s %s, v[20:23], a[0:3], 0' % (MFMA, acc))
        A('%s %s, v[24:27], a[4:7], %s' % (MFMA, acc, acc))
        A('s_nop 7')
    A('s_nop 15')
    stamp(A)
    A('s_mov_b32 exec_hi, 0')
    for mt in range(5):
        A('global_atomic_add_f32 v18, v%d, s[18:19] offset:%d' % (64 + mt * 16, mt * 128))
        A('global_atomic_add_f32 v18, v%d, s[18:19] offset:%d' % (65 + mt * 16, 2560 + mt * 128))
    A('s_mov_b64 exec, -1')
    A('s_waitcnt vmcnt(0)\ns_barrier')
    stamp(A)
    lt = A.lab('LDt')
    A('s_cmp_lg_u32 s23, 0\ns_cbranch_scc1 ' + lt)
    A('v_mov_b32 v19, 0\nv_mov_b32 v20, 1')
    A('s_mov_b64 exec, 1')
    A('global_atomic_add v21, v19, v20, s[16:17] sc0 sc1')
    A('s_waitcnt vmcnt(0)')
    A('v_mov_b32 v22, %d' % (ACT + 256))
    A('ds_write_b32 v22, v21')
    A('s_mov_b64 exec, -1')
    A(lt + ':')
    A('s_waitcnt lgkmcnt(0)\ns_barrier')
    A('v_mov_b32 v22, %d' % (ACT + 256))
    A('ds_read_b32 v21, v22\ns_waitcnt lgkmcnt(0)')
    A('v_readfirstlane_b32 s60, v21\ns_nop 3')
    stamp(A)
    A('s_cmp_lg_u32 s60, %d\ns_cbranch_scc1 LD_fl' % (NWG_D - 1))
    A('v_cmp_gt_u32 vcc, 160, v0\ns_and_saveexec_b64 s[60:61], vcc\ns_cbranch_execz LD_fl')
    A('v_cmp_le_u32 vcc, 80, v0\ns_nop 1')
    A('v_mov_b32 v7, 80\nv_cndmask_b32 v3, 0, v7, vcc\nv_sub_u32 v3, v0, v3')
    A('v_cndmask_b32 v4, v41, v43, vcc')
    A('v_cndmask_b32 v5, v40, v42, vcc')
    A('v_cndmask_b32 v6, 0, 1, vcc')
    A('v_mul_u32_u24 v6, 2560, v6\nv_lshlrev_b32 v7, 5, v3\nv_add_u32 v6, v6, v7\nv_add_u32 v6, 0x%x, v6' % Y_OFF)
    for rep in range(8):
        A('v_add_u32 v8, %d, v6' % (rep * 5120))
        A('global_load_dwordx4 %s, v8, s[18:19] sc1' % vr(64 + rep * 8, 4))
        A('global_load_dwordx4 %s, v8, s[18:19] offset:16 sc1' % vr(68 + rep * 8, 4))
    A('s_movk_i32 s62, 1280\nv_mul_lo_u32 v9, v4, s62\nv_lshlrev_b32 v7, 4, v3\nv_add_u32 v9, v9, v7')
    A('buffer_load_dwordx4 v[24:27], v9, s[36:39], 0 offen')
    A('buffer_load_dwordx4 v[28:31], v9, s[40:43], 0 offen')
    rnd_bf16(A, 5, 10)
    A('v_mul_f32 v5, 0xbfb8aa3b, v5\nv_exp_f32 v5, v5\ns_nop 0\nv_add_f32 v5, 1.0, v5\nv_rcp_f32 v5, v5\ns_nop 0')
    rnd_bf16(A, 5, 10)
    A('s_waitcnt vmcnt(0)')
    for e in range(8):
        for rep in range(1, 8):
            A('v_add_f32 v%d, v%d, v%d' % (64 + e, 64 + e, 64 + rep * 8 + e))
        rnd_bf16(A, 64 + e, 10)
        A('v_mul_f32 v%d, v%d, v5' % (64 + e, 64 + e))
        rnd_bf16(A, 64 + e, 10)
    for j in range(4):
        A('v_lshlrev_b32 v10, 16, v%d\nv_and_b32 v11, 0xffff0000, v%d' % (24 + j, 24 + j))
        A('v_add_f32 v%d, v%d, v10\nv_add_f32 v%d, v%d, v11' % (64 + 2 * j, 64 + 2 * j, 65 + 2 * j, 65 + 2 * j))
        rnd_bf16(A, 64 + 2 * j, 10); rnd_bf16(A, 65 + 2 * j, 10)
        A('v_lshlrev_b32 v10, 16, v%d\nv_and_b32 v11, 0xffff0000, v%d' % (28 + j, 28 + j))
        A('v_add_f32 v%d, v%d, v10\nv_add_f32 v%d, v%d, v11' % (64 + 2 * j, 64 + 2 * j, 65 + 2 * j, 65 + 2 * j))
        A('v_cvt_pk_bf16_f32 v%d, v%d, v%d' % (32 + j, 64 + 2 * j, 65 + 2 * j))
    A('buffer_store_dwordx4 v[32:35], v9, s[44:47], 0 offen')
    A('LD_fl:')
    if OPT['ts']: A('s_waitcnt vmcnt(0)')
    stamp(A); stamp_flush(A, 23)
    A('LD_end:\ns_endpgm')

def emit(A, OPT):
    kernel_b(A, OPT)
    kernel_c(A, OPT)
    kernel_d(A, OPT)
```
